```python
import torch

def _softmax(x, axis=-1):
    return torch.softmax(x, dim=axis)
def _gelu(x):
    return torch.nn.functional.gelu(x, approximate="tanh")
def _silu(x):
    return torch.nn.functional.silu(x)
def _sigmoid(x):
    return torch.sigmoid(x)
def _layernorm(x, axis=-1, eps=1e-5):
    m = x.mean(dim=axis, keepdim=True)
    v = x.var(dim=axis, keepdim=True, unbiased=False)
    return (x - m) / torch.sqrt(v + eps)
def _scatter_add(tgt, idx, src, axis=0):
    return tgt.clone().index_add_(axis, idx, src)
def _segment_sum(src, seg, n):
    out = torch.zeros((n,) + src.shape[1:], dtype=src.dtype)
    return out.index_add_(0, seg, src)
def _pad(x, pw):
    flat = tuple(v for pair in reversed(pw) for v in pair)
    return torch.nn.functional.pad(x, flat)

kernel_name = 'standalone__edm_precond__diffusion'

def setup_inputs():

    _w = (lambda a: (lambda t: t.to(torch.bfloat16) if t.is_floating_point() else t)(torch.as_tensor(a)))
    B, C, HW = 2, 512, 64
    return {
        "x": _w((lambda *s: torch.randn(*s, dtype=torch.bfloat16) * 0.4)(B, C, HW, HW)),
        "sigma": _w((lambda _x: torch.exp(torch.as_tensor(_x)))((lambda *s: torch.randn(*s, dtype=torch.bfloat16) * 3.2)(B))),
        "w_in": _w((lambda *s: torch.randn(*s, dtype=torch.bfloat16) * 3.2)(C, C) * (C ** -0.5)),
        "w_emb": _w((lambda *s: torch.randn(*s, dtype=torch.bfloat16) * 3.2)(1, C)),
        "w_out": _w((lambda *s: torch.randn(*s, dtype=torch.bfloat16) * 3.2)(C, C) * (C ** -0.5)),
    }

def reference(x, sigma, w_in, w_emb, w_out):
    B, C, H, W = x.shape
    sigma_data = 0.5
    s = sigma.reshape(B, 1, 1, 1)
    denom = s * s + sigma_data * sigma_data
    c_skip = (sigma_data * sigma_data) / denom
    c_out  = s * sigma_data / torch.sqrt(denom)
    c_in   = 1.0 / torch.sqrt(denom)
    c_noise = 0.25 * torch.log(sigma).reshape(B, 1)
    h = torch.einsum("bchw,cd->bdhw", c_in * x, w_in)
    h = h + (c_noise @ w_emb).reshape(B, C, 1, 1)
    h = _silu(h)
    Fx = torch.einsum("bchw,cd->bdhw", h, w_out)
    return c_skip * x + c_out * Fx
```

```python
class Asm:
    def __init__(self):
        self.L = []
        self.vm = []
        self.lg = []
    def __call__(self, s):
        for line in s.split("\n"):
            self.L.append("    " + line.strip() if not line.strip().endswith(":") else line.strip())
    def raw(self, s):
        self.L.append(s)
    def c(self, s):
        self.L.append("    ; " + s)
    def vmem(self, s, tag=None):
        self(s); self.vm.append(tag)
    def lds(self, s, tag=None):
        self(s); self.lg.append(tag)
    def _n(self, q, tags):
        idx = [i for i, t in enumerate(q) if t in tags]
        if not idx: return None
        return len(q) - 1 - max(idx)
    def wait(self, vm=None, lg=None):
        parts = []
        if vm is not None:
            if vm == "all": n = 0 if self.vm else None
            else: n = self._n(self.vm, vm if isinstance(vm, (list, set, tuple)) and not isinstance(vm, tuple) else [vm])
            if n is not None:
                n = min(n, 63)
                parts.append(f"vmcnt({n})"); self.vm = self.vm[len(self.vm) - n:] if n else []
        if lg is not None:
            if lg == "all": n = 0 if self.lg else None
            else: n = self._n(self.lg, lg if isinstance(lg, (list, set)) else [lg])
            if n is not None:
                n = min(n, 15)
                parts.append(f"lgkmcnt({n})"); self.lg = self.lg[len(self.lg) - n:] if n else []
        if parts: self("s_waitcnt " + " ".join(parts))
    def text(self):
        return "\n".join(self.L) + "\n"

HEADER = """; Kernarg layout for this problem (64 bytes, ptrs only, base s[0:1]):
"""
KNAME = "standalone__edm_precond__diffusion_kernel"
def wrap(body, grid, block, lds, nvgpr, accum, nsgpr=102):
    return (HEADER + f"; @launch grid=({grid},1,1) block=({block},1,1) lds={lds}\n"
        '.amdgcn_target "amdgcn-amd-amdhsa--gfx950"\n.text\n'
        f".globl {KNAME}\n.p2align 8\n.type {KNAME},@function\n{KNAME}:\n" + body +
        f""".section .rodata,"a"
.p2align 6
.amdhsa_kernel {KNAME}
  .amdhsa_next_free_vgpr {nvgpr}
  .amdhsa_next_free_sgpr {nsgpr}
  .amdhsa_accum_offset {accum}
  .amdhsa_group_segment_fixed_size 0
  .amdhsa_kernarg_size 64
  .amdhsa_user_sgpr_count 2
  .amdhsa_user_sgpr_kernarg_segment_ptr 1
  .amdhsa_system_sgpr_workgroup_id_x 1
.end_amdhsa_kernel
""")
```

```python
import sys
from asmlib import *

def consts(A, sSig, sB, vt, sK1, sK, sSkip, vNoise):
    s, t, den, sq, u, w = vt, vt+1, vt+2, vt+3, vt+4, vt+5
    def rne(d, x):
        A(f"v_cvt_pk_bf16_f32 v{d}, v{x}, v{x}")
        A(f"v_lshlrev_b32 v{d}, 16, v{d}")
    A(f"s_lshl_b32 s3, s{sB}, 4")
    A(f"s_lshr_b32 s3, s{sSig}, s3")
    A(f"s_lshl_b32 s3, s3, 16")
    A(f"v_mov_b32 v{s}, s3")
    A(f"v_mul_f32 v{t}, v{s}, v{s}")
    rne(t, t)
    A(f"v_add_f32 v{den}, 0x3e800000, v{t}")
    rne(den, den)
    A(f"v_sqrt_f32 v{sq}, v{den}")
    A(f"v_rcp_f32 v{u}, v{den}")
    A(f"v_log_f32 v{w}, v{s}")
    rne(sq, sq)
    rne(u, u)
    A(f"v_mul_f32 v{u}, 0x3e800000, v{u}")
    A(f"v_mul_f32 v{w}, 0x3f317218, v{w}")
    A(f"v_rcp_f32 v{t}, v{sq}")
    rne(w, w)
    A(f"v_readfirstlane_b32 s{sSkip}, v{u}")
    A(f"v_mul_f32 v{vNoise}, 0x3e800000, v{w}")
    A(f"v_mul_f32 v{u}, 0.5, v{s}")
    A(f"v_mul_f32 v{u}, v{u}, v{t}")
    rne(u, u)
    rne(t, t)
    A(f"v_rcp_f32 v{u}, v{u}")
    A(f"v_mul_f32 v{t}, 0xbfb8aa3b, v{t}")
    A(f"v_min_f32 v{u}, 0x7d000000, v{u}")
    A(f"v_mul_f32 v{u}, 0xbfb8aa3b, v{u}")
    A(f"v_readfirstlane_b32 s{sK1}, v{t}")
    A(f"s_mov_b32 s{sSkip+1}, s{sSkip}")
    A(f"v_readfirstlane_b32 s{sK}, v{u}")
    A(f"s_mov_b32 s{sK1+1}, s{sK1}")
    A(f"s_mov_b32 s{sK+1}, s{sK}")

def gen(XNT=1, ONT=0, TOUCH=1, STAMP=0):
    A = Asm()
    R = 6
    XB, HB, RB = 0, 32768, 65536
    acc1, acc2, bias, hp = 64, 128, 192, 32
    vL, vXo, vT = 1, 2, 3
    vWo = [4, 5, 6, 7]
    vA = [8, 9, 10, 11]
    vX = [12, 13]
    vH, vHw = 14, 15
    vR = [16, 17, 18, 19]
    vLin, vBr, vEmb, vNoise = 20, 21, 22, 23
    t0 = 24
    sW, sB, sXs, sRing, sSo = 28, 29, 30, 31, 32
    sK1, sK, sSkip, sSig = 52, 54, 56, 58
    if STAMP: A("s_memtime s[60:61]")
    A("s_load_dwordx16 s[36:51], s[0:1], 0")
    A("s_cmp_ge_u32 s2, 256")
    A("s_cbranch_scc1 Lend")
    A(f"v_and_b32 v{vL}, 63, v0")
    A(f"v_lshrrev_b32 v{t0}, 6, v0")
    A(f"v_lshrrev_b32 v{t0+1}, 4, v{vL}")
    A(f"v_readfirstlane_b32 s{sW}, v{t0}")
    A("s_and_b32 s3, s2, 7\ns_lshl_b32 s3, s3, 5\ns_lshr_b32 s4, s2, 3\ns_add_u32 s3, s3, s4")
    A(f"s_lshr_b32 s{sB}, s3, 7\ns_and_b32 s3, s3, 127\ns_lshl_b32 s3, s3, 6")
    A(f"s_lshl_b32 s5, s{sB}, 22\ns_add_u32 s3, s3, s5")
    A(f"s_lshl_b32 s5, s{sW}, 20\ns_add_u32 s{sXs}, s3, s5")
    A(f"s_mul_i32 s{sRing}, s{sW}, {R*4096}\ns_add_u32 s{sRing}, s{sRing}, {RB}")
    A(f"v_and_b32 v{t0+2}, 3, v{vL}")
    A(f"v_xor_b32 v{t0+3}, v{t0+2}, v{t0+1}")
    A(f"v_lshlrev_b32 v{t0+3}, 4, v{t0+3}")
    A(f"v_lshrrev_b32 v{t0+4}, 2, v{vL}")
    A(f"v_lshl_add_u32 v{vXo}, v{t0+4}, 13, v{t0+3}")
    A(f"v_and_b32 v{t0+3}, 15, v{vL}")
    A(f"v_lshlrev_b32 v{t0+5}, 2, v{t0+1}")
    A(f"v_xor_b32 v{t0+3}, v{t0+3}, v{t0+5}")
    A(f"v_lshlrev_b32 v{t0+3}, 4, v{t0+3}")
    A(f"v_lshl_add_u32 v{t0+3}, v{t0+1}, 10, v{t0+3}")
    A(f"v_lshl_add_u32 v{vWo[0]}, v{t0}, 8, v{t0+3}")
    for j in range(1, 4):
        A(f"v_add_u32 v{vWo[j]}, {3072*j}, v{vWo[0]}")
    A(f"s_lshl_b32 s5, s4, 1\ns_and_b32 s6, s{sW}, 1\ns_add_u32 s5, s5, s6\ns_lshl_b32 s5, s5, 13")
    A(f"v_lshl_add_u32 v{vT}, v{vL}, 7, s5")
    A(f"v_lshlrev_b32 v{vEmb}, 2, v0")
    A("s_waitcnt lgkmcnt(0)")
    A(f"s_load_dword s{sSig}, s[38:39], 0")
    def srd(d, p, n):
        A(f"s_mov_b32 s{d}, s{p}\ns_mov_b32 s{d+1}, s{p+1}\ns_mov_b32 s{d+2}, {n}\ns_mov_b32 s{d+3}, 0x20000")
    srd(8, 36, 0x800000); srd(12, 40, 0x80000); srd(16, 44, 0x80000); srd(20, 46, 0x800000); srd(24, 42, 1024)
    if TOUCH:
        A(f"s_cmp_lt_u32 s{sW}, 2")
        A("s_cselect_b32 s64, s40, s44\ns_cselect_b32 s65, s41, s45\ns_mov_b32 s66, 0x80000\ns_mov_b32 s67, 0x20000")
        A.vmem(f"buffer_load_dword v{t0+7}, v{vT}, s[64:67], 0 offen", "touch")
    A.vmem(f"buffer_load_dword v{vEmb}, v{vEmb}, s[24:27], 0 offen", "emb")
    A(f"s_lshl_b32 s5, s{sW}, 13")
    A(f"s_mov_b32 s6, s{sXs}")
    for i in range(8):
        A(f"s_add_u32 m0, s5, {XB + i*1024}")
        if i: A(f"s_add_u32 s6, s6, {16*8192}")
        else: A("s_nop 0")
        A.vmem(f"buffer_load_dwordx4 v{vXo}, s[8:11], s6 offen{' nt' if XNT else ''} lds", "x")
    def wdma(step):
        srdn = 12 if step < 32 else 16
        A(f"s_add_u32 m0, s{sRing}, {(step % R) * 4096}")
        A(f"s_mov_b32 s{sSo}, {(step % 32) * 16384}")
        for j in range(4):
            A.vmem(f"buffer_load_dwordx4 v{vWo[j]}, s[{srdn}:{srdn+3}], s{sSo} offen offset:{j*1024} lds", ("w", step))
    for s in range(R): wdma(s)
    r_, cc, gam, hi, c2 = t0, t0+2, t0+3, t0+5, t0+6
    A(f"v_and_b32 v{r_}, 3, v{t0+4}")
    A(f"v_and_b32 v{gam}, 1, v{t0+1}")
    A(f"v_lshrrev_b32 v{hi}, 5, v{vL}")
    A(f"v_lshrrev_b32 v{c2}, 1, v{cc}")
    A(f"v_lshl_add_u32 v{c2}, v{gam}, 1, v{c2}")
    A(f"v_and_b32 v{cc}, 1, v{cc}")
    A(f"v_lshlrev_b32 v{cc}, 3, v{cc}")
    A(f"v_lshl_add_u32 v{gam}, v{hi}, 2, v{r_}")
    A(f"v_lshl_add_u32 v{t0+1}, v{gam}, 8, v{cc}")
    A(f"v_add_u32 v{t0+1}, s{sRing}, v{t0+1}")
    A(f"v_lshl_add_u32 v{t0+1}, v{c2}, 4, v{t0+1}")
    for tau in range(4):
        A(f"v_xor_b32 v{t0+4}, {tau}, v{r_}")
        A(f"v_lshl_add_u32 v{vA[tau]}, v{t0+4}, 6, v{t0+1}")
    A(f"v_lshl_add_u32 v{t0+1}, v{gam}, 6, v{cc}")
    A(f"v_xor_b32 v{t0+4}, v{c2}, v{hi}")
    A(f"v_lshl_add_u32 v{vX[0]}, v{t0+4}, 4, v{t0+1}")
    A(f"v_xor_b32 v{vX[1]}, 32, v{vX[0]}")
    A(f"v_add_u32 v{vX[1]}, 512, v{vX[1]}")
    A(f"v_lshlrev_b32 v{vLin}, 4, v{vL}")
    A(f"v_add_u32 v{vH}, {HB}, v{vLin}")
    A(f"v_add_u32 v{vHw}, s5, v{vH}")
    A(f"v_add_u32 v{vLin}, s5, v{vLin}")
    A(f"v_and_b32 v{t0+1}, 31, v{vL}")
    A(f"v_lshlrev_b32 v{t0+1}, 6, v{t0+1}")
    A(f"v_lshl_add_u32 v{t0+1}, v{hi}, 3, v{t0+1}")
    A(f"v_add_u32 v{t0+1}, s5, v{t0+1}")
    for q in range(4):
        A(f"v_xor_b32 v{t0+4}, {q}, v{r_}")
        A(f"v_lshl_add_u32 v{vR[q]}, v{t0+4}, 4, v{t0+1}")
    A(f"v_lshlrev_b32 v{vBr}, 4, v{hi}")
    A(f"v_add_u32 v{vBr}, s5, v{vBr}")
    A(f"v_add_u32 v{vBr}, {HB}, v{vBr}")
    A("s_waitcnt lgkmcnt(0)")
    consts(A, sSig, sB, hp, sK1, sK, sSkip, vNoise)
    A.wait(vm="emb")
    A(f"v_lshlrev_b32 v{hp}, 16, v{vEmb}")
    A(f"v_and_b32 v{hp+1}, 0xffff0000, v{vEmb}")
    A(f"v_mul_f32 v{hp}, v{hp}, v{vNoise}")
    A(f"v_mul_f32 v{hp+1}, v{hp+1}, v{vNoise}")
    A(f"v_cvt_pk_bf16_f32 v{hp+2}, v{hp}, v{hp+1}")
    A(f"v_lshlrev_b32 v{hp}, 16, v{hp+2}")
    A(f"v_and_b32 v{hp+1}, 0xffff0000, v{hp+2}")
    A(f"v_mul_f32 v{hp}, 0xbfb8aa3b, v{hp}")
    A(f"v_mul_f32 v{hp+1}, 0xbfb8aa3b, v{hp+1}")
    A(f"v_lshlrev_b32 v{hp+2}, 3, v{vL}")
    A(f"v_add_u32 v{hp+2}, s5, v{hp+2}")
    A.lds(f"ds_write_b64 v{hp+2}, v[{hp}:{hp+1}] offset:{HB}", "bw")
    for tau in range(4):
        for q in range(4):
            b = bias + tau*16 + q*4
            A.lds(f"ds_read_b128 v[{b}:{b+3}], v{vBr} offset:{(32*tau+8*q)*4}", "br")
    A.wait(vm="x", lg="all")
    A("s_barrier")
    if STAMP: A("s_memtime s[62:63]")
    for tau in range(4):
        for q in range(4):
            b = hp + (tau*4+q)*2
            A.lds(f"ds_read_b64 v[{b}:{b+1}], v{vR[q]} offset:{XB + tau*2048}", "res")
    A.wait(lg="all")
    for tau in range(4):
        for q in range(4):
            b = hp + (tau*4+q)*2
            d = acc2 + tau*16 + q*4
            A(f"v_lshlrev_b32 v{d}, 16, v{b}")
            A(f"v_and_b32 v{d+1}, 0xffff0000, v{b}")
            A(f"v_lshlrev_b32 v{d+2}, 16, v{b+1}")
            A(f"v_and_b32 v{d+3}, 0xffff0000, v{b+1}")
            A(f"v_pk_mul_f32 v[{d}:{d+1}], v[{d}:{d+1}], s[{sSkip}:{sSkip+1}]")
            A(f"v_pk_mul_f32 v[{d+2}:{d+3}], v[{d+2}:{d+3}], s[{sSkip}:{sSkip+1}]")
    def frag_reads(step):
        fb = (step & 1) * 20
        out = []
        if step < 32:
            for rho in range(2):
                out.append(f"ds_read_b64_tr_b16 a[{fb+16+2*rho}:{fb+17+2*rho}], v{vX[rho]} offset:{XB + step*1024}")
        else:
            out.append(f"ds_read_b128 a[{fb+16}:{fb+19}], v{vH} offset:{(step-32)*1024}")
        for tau in range(4):
            for rho in range(2):
                out.append(f"ds_read_b64_tr_b16 a[{fb+4*tau+2*rho}:{fb+4*tau+2*rho+1}], v{vA[tau]} offset:{(step % R)*4096 + rho*2048}")
        return out
    def mfmas(step):
        fb = (step & 1) * 20
        out = []
        for tau in range(4):
            w = f"a[{fb+4*tau}:{fb+4*tau+3}]"; p = f"a[{fb+16}:{fb+19}]"
            if step < 32:
                d = acc1 + 16*tau
                c = "0" if step == 0 else f"v[{d}:{d+15}]"
                out.append(f"v_mfma_f32_32x32x16_bf16 v[{d}:{d+15}], {w}, {p}, {c}")
            else:
                d = acc2 + 16*tau
                out.append(f"v_mfma_f32_32x32x16_bf16 v[{d}:{d+15}], {p}, {w}, v[{d}:{d+15}]")
        return out
    def gemm(s0, s1):
        A.wait(vm=("w", s0))
        for x in frag_reads(s0): A.lds(x, ("f", s0))
        for s in range(s0, s1):
            nxt = s + 1 < s1
            A.wait(lg="all")
            if s + R < 64: wdma(s + R)
            m = mfmas(s)
            A(m[0])
            if nxt: A.wait(vm=("w", s + 1))
            rd = frag_reads(s + 1) if nxt else []
            k = 0
            for i in range(1, 4):
                n = (len(rd) * i) // 3
                for x in rd[k:n]: A.lds(x, ("f", s + 1))
                k = n
                A(m[i])
    gemm(0, 32)
    if STAMP: A("s_memtime s[68:69]")
    A("s_nop 15")
    for tau in range(4):
        for half in range(2):
            a0 = acc1 + tau*16 + half*8; b0 = bias + tau*16 + half*8
            for p in range(4):
                A(f"v_pk_fma_f32 v[{a0+2*p}:{a0+2*p+1}], v[{a0+2*p}:{a0+2*p+1}], s[{sK1}:{sK1+1}], v[{b0+2*p}:{b0+2*p+1}]")
            for p in range(8):
                A(f"v_exp_f32 v{b0+p}, v{a0+p}")
            for p in range(4):
                A(f"v_pk_fma_f32 v[{b0+2*p}:{b0+2*p+1}], v[{b0+2*p}:{b0+2*p+1}], s[{sK}:{sK+1}], s[{sK}:{sK+1}]")
            for p in range(8):
                A(f"v_rcp_f32 v{b0+p}, v{b0+p}")
            for p in range(4):
                A(f"v_pk_mul_f32 v[{a0+2*p}:{a0+2*p+1}], v[{a0+2*p}:{a0+2*p+1}], v[{b0+2*p}:{b0+2*p+1}]")
            h = hp + (tau*2+half)*4
            for p in range(4):
                A(f"v_cvt_pk_bf16_f32 v{h+p}, v{a0+2*p}, v{a0+2*p+1}")
            A.lds(f"ds_write_b128 v{vHw}, v[{h}:{h+3}] offset:{(tau*2+half)*1024}", "hw")
    A.wait(lg="all")
    A("s_barrier")
    if STAMP: A("s_memtime s[70:71]")
    gemm(32, 64)
    if STAMP: A("s_memtime s[72:73]")
    A("s_nop 15")
    for tau in range(4):
        for q in range(4):
            b = hp + (tau*4+q)*2
            d = acc2 + tau*16 + q*4
            A(f"v_cvt_pk_bf16_f32 v{b}, v{d}, v{d+1}")
            A(f"v_cvt_pk_bf16_f32 v{b+1}, v{d+2}, v{d+3}")
            A.lds(f"ds_write_b64 v{vR[q]}, v[{b}:{b+1}] offset:{XB + tau*2048}", "ow")
    A.wait(lg="all")
    for i in range(8):
        A.lds(f"ds_read_b128 v[{acc1+4*i}:{acc1+4*i+3}], v{vLin} offset:{XB + i*1024}", ("o", i))
    A(f"s_mov_b32 s6, s{sXs}")
    of = {0: "", 1: " nt", 2: " sc1", 3: " sc0 sc1", 4: " sc1 nt"}[ONT]
    for i in range(8):
        A.wait(lg=[("o", i)])
        A.vmem(f"buffer_store_dwordx4 v[{acc1+4*i}:{acc1+4*i+3}], v{vXo}, s[20:23], s6 offen{of}", "st")
        if i < 7: A(f"s_add_u32 s6, s6, {16*8192}")
    if STAMP:
        A("s_waitcnt vmcnt(0)")
        A("s_memtime s[74:75]")
        A("s_waitcnt lgkmcnt(0)")
        srd(64, 50, 0x10000000)
        for i, s in enumerate([60, 62, 68, 70, 72, 74]):
            A(f"v_mov_b32 v{32+i}, s{s}")
        A(f"s_lshl_b32 s3, s2, 2\ns_add_u32 s3, s3, s{sW}\ns_lshl_b32 s3, s3, 5")
        A("v_mov_b32 v40, 0")
        A(f"v_cmp_eq_u32 vcc, 0, v{vL}\ns_and_saveexec_b64 s[76:77], vcc")
        A("buffer_store_dwordx4 v[32:35], v40, s[64:67], s3 offen")
        A("buffer_store_dwordx2 v[36:37], v40, s[64:67], s3 offen offset:16")
    A("Lend:")
    A("s_endpgm")
    return wrap(A.text(), 256, 256, 163840, 296, 256)

if __name__ == "__main__":
    kw = dict(a.split("=") for a in sys.argv[2:])
    kw = {k: int(v) for k, v in kw.items()}
    open(sys.argv[1], "w").write(gen(**kw))
```

```python
import sys
from asmlib import *

def consts(A, sSig, sB, vt, sK1, sK, sSkip, vNoise):
    s, t, den, sq, u, w = vt, vt+1, vt+2, vt+3, vt+4, vt+5
    def rne(d, x):
        A(f"v_cvt_pk_bf16_f32 v{d}, v{x}, v{x}")
        A(f"v_lshlrev_b32 v{d}, 16, v{d}")
    A(f"s_lshl_b32 s3, s{sB}, 4")
    A(f"s_lshr_b32 s3, s{sSig}, s3")
    A(f"s_lshl_b32 s3, s3, 16")
    A(f"v_mov_b32 v{s}, s3")
    A(f"v_mul_f32 v{t}, v{s}, v{s}")
    rne(t, t)
    A(f"v_add_f32 v{den}, 0x3e800000, v{t}")
    rne(den, den)
    A(f"v_sqrt_f32 v{sq}, v{den}")
    A(f"v_rcp_f32 v{u}, v{den}")
    A(f"v_log_f32 v{w}, v{s}")
    rne(sq, sq)
    rne(u, u)
    A(f"v_mul_f32 v{u}, 0x3e800000, v{u}")
    A(f"v_mul_f32 v{w}, 0x3f317218, v{w}")
    A(f"v_rcp_f32 v{t}, v{sq}")
    rne(w, w)
    A(f"v_readfirstlane_b32 s{sSkip}, v{u}")
    A(f"v_mul_f32 v{vNoise}, 0x3e800000, v{w}")
    A(f"v_mul_f32 v{u}, 0.5, v{s}")
    A(f"v_mul_f32 v{u}, v{u}, v{t}")
    rne(u, u)
    rne(t, t)
    A(f"v_rcp_f32 v{u}, v{u}")
    A(f"v_mul_f32 v{t}, 0xbfb8aa3b, v{t}")
    A(f"v_min_f32 v{u}, 0x7d000000, v{u}")
    A(f"v_mul_f32 v{u}, 0xbfb8aa3b, v{u}")
    A(f"v_readfirstlane_b32 s{sK1}, v{t}")
    A(f"s_mov_b32 s{sSkip+1}, s{sSkip}")
    A(f"v_readfirstlane_b32 s{sK}, v{u}")
    A(f"s_mov_b32 s{sK1+1}, s{sK1}")
    A(f"s_mov_b32 s{sK+1}, s{sK}")

def gen(XNT=1, ONT=0, TOUCH=1, STAMP=0):
    A = Asm()
    R = 6
    XB, HB, RB = 0, 32768, 65536
    acc1, acc2, bias, hp = 64, 128, 192, 32
    vL, vXo, vT = 1, 2, 3
    vWo = [4, 5, 6, 7]
    vA = [8, 9, 10, 11]
    vX = [12, 13]
    vH, vHw = 14, 15
    vR = [16, 17, 18, 19]
    vLin, vBr, vEmb, vNoise = 20, 21, 22, 23
    t0 = 24
    sW, sB, sXs, sRing, sSo = 28, 29, 30, 31, 32
    sK1, sK, sSkip, sSig = 52, 54, 56, 58
    if STAMP: A("s_memtime s[60:61]\ns_memrealtime s[78:79]")
    A("s_load_dwordx16 s[36:51], s[0:1], 0")
    A("s_cmp_ge_u32 s2, 256")
    A("s_cbranch_scc1 Lend")
    A(f"v_and_b32 v{vL}, 63, v0")
    A(f"v_lshrrev_b32 v{t0}, 6, v0")
    A(f"v_lshrrev_b32 v{t0+1}, 4, v{vL}")
    A(f"v_readfirstlane_b32 s{sW}, v{t0}")
    A("s_and_b32 s3, s2, 7\ns_lshl_b32 s3, s3, 5\ns_lshr_b32 s4, s2, 3\ns_add_u32 s3, s3, s4")
    A(f"s_lshr_b32 s{sB}, s3, 7\ns_and_b32 s3, s3, 127\ns_lshl_b32 s3, s3, 6")
    A(f"s_lshl_b32 s5, s{sB}, 22\ns_add_u32 s3, s3, s5")
    A(f"s_lshl_b32 s5, s{sW}, 20\ns_add_u32 s{sXs}, s3, s5")
    A(f"s_mul_i32 s{sRing}, s{sW}, {R*4096}\ns_add_u32 s{sRing}, s{sRing}, {RB}")
    A(f"v_and_b32 v{t0+2}, 3, v{vL}")
    A(f"v_xor_b32 v{t0+3}, v{t0+2}, v{t0+1}")
    A(f"v_lshlrev_b32 v{t0+3}, 4, v{t0+3}")
    A(f"v_lshrrev_b32 v{t0+4}, 2, v{vL}")
    A(f"v_lshl_add_u32 v{vXo}, v{t0+4}, 13, v{t0+3}")
    A(f"v_and_b32 v{t0+3}, 15, v{vL}")
    A(f"v_lshlrev_b32 v{t0+5}, 2, v{t0+1}")
    A(f"v_xor_b32 v{t0+3}, v{t0+3}, v{t0+5}")
    A(f"v_lshlrev_b32 v{t0+3}, 4, v{t0+3}")
    A(f"v_lshl_add_u32 v{t0+3}, v{t0+1}, 10, v{t0+3}")
    A(f"v_lshl_add_u32 v{vWo[0]}, v{t0}, 8, v{t0+3}")
    for j in range(1, 4):
        A(f"v_add_u32 v{vWo[j]}, {3072*j}, v{vWo[0]}")
    A(f"s_lshl_b32 s5, s4, 1\ns_and_b32 s6, s{sW}, 1\ns_add_u32 s5, s5, s6\ns_lshl_b32 s5, s5, 13")
    A(f"v_lshl_add_u32 v{vT}, v{vL}, 7, s5")
    A(f"v_lshlrev_b32 v{vEmb}, 2, v0")
    A("s_waitcnt lgkmcnt(0)")
    A(f"s_load_dword s{sSig}, s[38:39], 0")
    def srd(d, p, n):
        A(f"s_mov_b32 s{d}, s{p}\ns_mov_b32 s{d+1}, s{p+1}\ns_mov_b32 s{d+2}, {n}\ns_mov_b32 s{d+3}, 0x20000")
    srd(8, 36, 0x800000); srd(12, 40, 0x80000); srd(16, 44, 0x80000); srd(20, 46, 0x800000); srd(24, 42, 1024)
    if TOUCH:
        A(f"s_cmp_lt_u32 s{sW}, 2")
        A("s_cselect_b32 s64, s40, s44\ns_cselect_b32 s65, s41, s45\ns_mov_b32 s66, 0x80000\ns_mov_b32 s67, 0x20000")
        A.vmem(f"buffer_load_dword v{t0+7}, v{vT}, s[64:67], 0 offen", "touch")
    A.vmem(f"buffer_load_dword v{vEmb}, v{vEmb}, s[24:27], 0 offen", "emb")
    A(f"s_lshl_b32 s5, s{sW}, 13")
    A(f"s_mov_b32 s6, s{sXs}")
    for i in range(8):
        A(f"s_add_u32 m0, s5, {XB + i*1024}")
        if i: A(f"s_add_u32 s6, s6, {16*8192}")
        else: A("s_nop 0")
        A.vmem(f"buffer_load_dwordx4 v{vXo}, s[8:11], s6 offen{' nt' if XNT else ''} lds", "x")
    def wdma(step):
        srdn = 12 if step < 32 else 16
        A(f"s_add_u32 m0, s{sRing}, {(step % R) * 4096}")
        A(f"s_mov_b32 s{sSo}, {(step % 32) * 16384}")
        for j in range(4):
            A.vmem(f"buffer_load_dwordx4 v{vWo[j]}, s[{srdn}:{srdn+3}], s{sSo} offen offset:{j*1024} lds", ("w", step))
    for s in range(R): wdma(s)
    r_, cc, gam, hi, c2 = t0, t0+2, t0+3, t0+5, t0+6
    A(f"v_and_b32 v{r_}, 3, v{t0+4}")
    A(f"v_and_b32 v{gam}, 1, v{t0+1}")
    A(f"v_lshrrev_b32 v{hi}, 5, v{vL}")
    A(f"v_lshrrev_b32 v{c2}, 1, v{cc}")
    A(f"v_lshl_add_u32 v{c2}, v{gam}, 1, v{c2}")
    A(f"v_and_b32 v{cc}, 1, v{cc}")
    A(f"v_lshlrev_b32 v{cc}, 3, v{cc}")
    A(f"v_lshl_add_u32 v{gam}, v{hi}, 2, v{r_}")
    A(f"v_lshl_add_u32 v{t0+1}, v{gam}, 8, v{cc}")
    A(f"v_add_u32 v{t0+1}, s{sRing}, v{t0+1}")
    A(f"v_lshl_add_u32 v{t0+1}, v{c2}, 4, v{t0+1}")
    for tau in range(4):
        A(f"v_xor_b32 v{t0+4}, {tau}, v{r_}")
        A(f"v_lshl_add_u32 v{vA[tau]}, v{t0+4}, 6, v{t0+1}")
    A(f"v_lshl_add_u32 v{t0+1}, v{gam}, 6, v{cc}")
    A(f"v_xor_b32 v{t0+4}, v{c2}, v{hi}")
    A(f"v_lshl_add_u32 v{vX[0]}, v{t0+4}, 4, v{t0+1}")
    A(f"v_xor_b32 v{vX[1]}, 32, v{vX[0]}")
    A(f"v_add_u32 v{vX[1]}, 512, v{vX[1]}")
    A(f"v_lshlrev_b32 v{vLin}, 4, v{vL}")
    A(f"v_add_u32 v{vH}, {HB}, v{vLin}")
    A(f"v_add_u32 v{vHw}, s5, v{vH}")
    A(f"v_add_u32 v{vLin}, s5, v{vLin}")
    A(f"v_and_b32 v{t0+1}, 31, v{vL}")
    A(f"v_lshlrev_b32 v{t0+1}, 6, v{t0+1}")
    A(f"v_lshl_add_u32 v{t0+1}, v{hi}, 3, v{t0+1}")
    A(f"v_add_u32 v{t0+1}, s5, v{t0+1}")
    for q in range(4):
        A(f"v_xor_b32 v{t0+4}, {q}, v{r_}")
        A(f"v_lshl_add_u32 v{vR[q]}, v{t0+4}, 4, v{t0+1}")
    A(f"v_lshlrev_b32 v{vBr}, 4, v{hi}")
    A(f"v_add_u32 v{vBr}, s5, v{vBr}")
    A(f"v_add_u32 v{vBr}, {HB}, v{vBr}")
    A("s_waitcnt lgkmcnt(0)")
    consts(A, sSig, sB, hp, sK1, sK, sSkip, vNoise)
    A.wait(vm="emb")
    A(f"v_lshlrev_b32 v{hp}, 16, v{vEmb}")
    A(f"v_and_b32 v{hp+1}, 0xffff0000, v{vEmb}")
    A(f"v_mul_f32 v{hp}, v{hp}, v{vNoise}")
    A(f"v_mul_f32 v{hp+1}, v{hp+1}, v{vNoise}")
    A(f"v_cvt_pk_bf16_f32 v{hp+2}, v{hp}, v{hp+1}")
    A(f"v_lshlrev_b32 v{hp}, 16, v{hp+2}")
    A(f"v_and_b32 v{hp+1}, 0xffff0000, v{hp+2}")
    A(f"v_mul_f32 v{hp}, 0xbfb8aa3b, v{hp}")
    A(f"v_mul_f32 v{hp+1}, 0xbfb8aa3b, v{hp+1}")
    A(f"v_lshlrev_b32 v{hp+2}, 3, v{vL}")
    A(f"v_add_u32 v{hp+2}, s5, v{hp+2}")
    A.lds(f"ds_write_b64 v{hp+2}, v[{hp}:{hp+1}] offset:{HB}", "bw")
    for tau in range(4):
        for q in range(4):
            b = bias + tau*16 + q*4
            A.lds(f"ds_read_b128 v[{b}:{b+3}], v{vBr} offset:{(32*tau+8*q)*4}", "br")
    A.wait(vm="x", lg="all")
    A("s_barrier")
    if STAMP: A("s_memtime s[62:63]")
    for tau in range(4):
        for q in range(4):
            b = hp + (tau*4+q)*2
            A.lds(f"ds_read_b64 v[{b}:{b+1}], v{vR[q]} offset:{XB + tau*2048}", "res")
    A.wait(lg="all")
    for tau in range(4):
        for q in range(4):
            b = hp + (tau*4+q)*2
            d = acc2 + tau*16 + q*4
            A(f"v_lshlrev_b32 v{d}, 16, v{b}")
            A(f"v_and_b32 v{d+1}, 0xffff0000, v{b}")
            A(f"v_lshlrev_b32 v{d+2}, 16, v{b+1}")
            A(f"v_and_b32 v{d+3}, 0xffff0000, v{b+1}")
            A(f"v_pk_mul_f32 v[{d}:{d+1}], v[{d}:{d+1}], s[{sSkip}:{sSkip+1}]")
            A(f"v_pk_mul_f32 v[{d+2}:{d+3}], v[{d+2}:{d+3}], s[{sSkip}:{sSkip+1}]")
    def frag_reads(step):
        fb = (step & 1) * 20
        out = []
        if step < 32:
            for rho in range(2):
                out.append(f"ds_read_b64_tr_b16 a[{fb+16+2*rho}:{fb+17+2*rho}], v{vX[rho]} offset:{XB + step*1024}")
        else:
            out.append(f"ds_read_b128 a[{fb+16}:{fb+19}], v{vH} offset:{(step-32)*1024}")
        for tau in range(4):
            for rho in range(2):
                out.append(f"ds_read_b64_tr_b16 a[{fb+4*tau+2*rho}:{fb+4*tau+2*rho+1}], v{vA[tau]} offset:{(step % R)*4096 + rho*2048}")
        return out
    def mfmas(step):
        fb = (step & 1) * 20
        out = []
        for tau in range(4):
            w = f"a[{fb+4*tau}:{fb+4*tau+3}]"; p = f"a[{fb+16}:{fb+19}]"
            if step < 32:
                d = acc1 + 16*tau
                c = "0" if step == 0 else f"v[{d}:{d+15}]"
                out.append(f"v_mfma_f32_32x32x16_bf16 v[{d}:{d+15}], {w}, {p}, {c}")
            else:
                d = acc2 + 16*tau
                out.append(f"v_mfma_f32_32x32x16_bf16 v[{d}:{d+15}], {p}, {w}, v[{d}:{d+15}]")
        return out
    def gemm(s0, s1):
        A.wait(vm=("w", s0))
        for x in frag_reads(s0): A.lds(x, ("f", s0))
        for s in range(s0, s1):
            nxt = s + 1 < s1
            A.wait(lg="all")
            if s + R < 64: wdma(s + R)
            m = mfmas(s)
            A(m[0])
            if nxt: A.wait(vm=("w", s + 1))
            rd = frag_reads(s + 1) if nxt else []
            k = 0
            for i in range(1, 4):
                n = (len(rd) * i) // 3
                for x in rd[k:n]: A.lds(x, ("f", s + 1))
                k = n
                A(m[i])
    gemm(0, 32)
    if STAMP: A("s_memtime s[68:69]")
    A("s_nop 15")
    for tau in range(4):
        for half in range(2):
            a0 = acc1 + tau*16 + half*8; b0 = bias + tau*16 + half*8
            for p in range(4):
                A(f"v_pk_fma_f32 v[{a0+2*p}:{a0+2*p+1}], v[{a0+2*p}:{a0+2*p+1}], s[{sK1}:{sK1+1}], v[{b0+2*p}:{b0+2*p+1}]")
            for p in range(8):
                A(f"v_exp_f32 v{b0+p}, v{a0+p}")
            for p in range(4):
                A(f"v_pk_fma_f32 v[{b0+2*p}:{b0+2*p+1}], v[{b0+2*p}:{b0+2*p+1}], s[{sK}:{sK+1}], s[{sK}:{sK+1}]")
            for p in range(8):
                A(f"v_rcp_f32 v{b0+p}, v{b0+p}")
            for p in range(4):
                A(f"v_pk_mul_f32 v[{a0+2*p}:{a0+2*p+1}], v[{a0+2*p}:{a0+2*p+1}], v[{b0+2*p}:{b0+2*p+1}]")
            h = hp + (tau*2+half)*4
            for p in range(4):
                A(f"v_cvt_pk_bf16_f32 v{h+p}, v{a0+2*p}, v{a0+2*p+1}")
            A.lds(f"ds_write_b128 v{vHw}, v[{h}:{h+3}] offset:{(tau*2+half)*1024}", "hw")
    A.wait(lg="all")
    A("s_barrier")
    if STAMP: A("s_memtime s[70:71]")
    gemm(32, 64)
    if STAMP: A("s_memtime s[72:73]")
    A("s_nop 15")
    for tau in range(4):
        for q in range(4):
            b = hp + (tau*4+q)*2
            d = acc2 + tau*16 + q*4
            A(f"v_cvt_pk_bf16_f32 v{b}, v{d}, v{d+1}")
            A(f"v_cvt_pk_bf16_f32 v{b+1}, v{d+2}, v{d+3}")
            A.lds(f"ds_write_b64 v{vR[q]}, v[{b}:{b+1}] offset:{XB + tau*2048}", "ow")
    A.wait(lg="all")
    for i in range(8):
        A.lds(f"ds_read_b128 v[{acc1+4*i}:{acc1+4*i+3}], v{vLin} offset:{XB + i*1024}", ("o", i))
    A(f"s_mov_b32 s6, s{sXs}")
    of = {0: "", 1: " nt", 2: " sc1", 3: " sc0 sc1", 4: " sc1 nt"}[ONT]
    for i in range(8):
        A.wait(lg=[("o", i)])
        A.vmem(f"buffer_store_dwordx4 v[{acc1+4*i}:{acc1+4*i+3}], v{vXo}, s[20:23], s6 offen{of}", "st")
        if i < 7: A(f"s_add_u32 s6, s6, {16*8192}")
    if STAMP:
        A("s_waitcnt vmcnt(0)")
        A("s_memtime s[74:75]\ns_memrealtime s[80:81]")
        A("s_waitcnt lgkmcnt(0)")
        srd(64, 50, 0x10000000)
        for i, s in enumerate([60, 62, 68, 70, 72, 74, 78, 80]):
            A(f"v_mov_b32 v{32+i}, s{s}")
        A(f"s_lshl_b32 s3, s2, 2\ns_add_u32 s3, s3, s{sW}\ns_lshl_b32 s3, s3, 5")
        A("v_mov_b32 v40, 0")
        A(f"v_cmp_eq_u32 vcc, 0, v{vL}\ns_and_saveexec_b64 s[76:77], vcc")
        A("buffer_store_dwordx4 v[32:35], v40, s[64:67], s3 offen")
        A("buffer_store_dwordx4 v[36:39], v40, s[64:67], s3 offen offset:16")
    A("Lend:")
    A("s_endpgm")
    return wrap(A.text(), 256, 256, 163840, 296, 256)

if __name__ == "__main__":
    kw = dict(a.split("=") for a in sys.argv[2:])
    kw = {k: int(v) for k, v in kw.items()}
    open(sys.argv[1], "w").write(gen(**kw))
```

```python
import sys
from asmlib import *
from gen_a import consts
NSTAMP = 10

def gen(XNT=1, ONT=1, TW=1, TE=0, TC=1, STAMP=0, FLAGS=35, POLLS=39, CHKS=42, PNT=1, X2=4, FORCESLOW=0, EXWS=0):
    A = Asm()
    R = 12
    RB = 65536
    acc1, acc2, bias, hp, tmp = 64, 128, 192, 32, 224
    vL, vXo, vOo, vT = 1, 2, 3, 4
    vWo = [5, 6, 7, 8]
    vA = [9, 10]; vX = [11, 12]
    vH, vHw, vRes, vSt, vLin, vBr, vEmb, vNoise, vPoll, vFl = 13, 14, [15, 16], 17, 18, 19, 20, 21, 22, 23
    t0 = 24
    sW, sB, sXs, sRing, sSo, sRot, sR, sOut, sPar = 28, 29, 30, 31, 32, 33, 34, 35, 7
    sK1, sK, sSkip, sSig = 52, 54, 56, 58
    sFo, sFp, sOA, sOB, sPA, sPB, sXcc, sCnt, sSlow = 59, 60, 61, 62, 63, 68, 69, 70, 71
    stamps = []
    def stamp():
        if STAMP:
            s = 76 + 2 * len(stamps); stamps.append(s)
            A(f"s_memtime s[{s}:{s+1}]" if STAMP == 1 else f"s_memrealtime s[{s}:{s+1}]")
    stamp()
    if STAMP: A("s_memrealtime s[96:97]")
    A("s_load_dwordx16 s[36:51], s[0:1], 0")
    A("s_cmp_ge_u32 s2, 256")
    A("s_cbranch_scc1 Lend")
    A(f"v_and_b32 v{vL}, 63, v0")
    A(f"v_lshrrev_b32 v{t0}, 6, v0")
    A(f"v_lshrrev_b32 v{t0+1}, 3, v{vL}")
    A(f"v_readfirstlane_b32 s{sW}, v{t0}")
    A(f"s_lshr_b32 s4, s2, 3\ns_and_b32 s{sR}, s4, 1\ns_lshr_b32 s5, s2, 4\ns_and_b32 s3, s2, 7")
    A("s_lshl_b32 s6, s5, 3\ns_add_u32 s3, s3, s6")
    A(f"s_lshr_b32 s{sB}, s3, 6\ns_and_b32 s3, s3, 63\ns_lshl_b32 s3, s3, 7")
    A(f"s_lshl_b32 s6, s{sB}, 22\ns_add_u32 s3, s3, s6")
    A(f"s_lshl_b32 s6, s{sW}, 16\ns_add_u32 s{sXs}, s3, s6")
    A(f"s_lshl_b32 s6, s{sW}, 19\ns_add_u32 s3, s3, s6")
    A(f"s_lshl_b32 s6, s{sR}, 21\ns_add_u32 s{sOut}, s3, s6\ns_xor_b32 s{sPar}, s{sOut}, 0x200000")
    A(f"s_lshl_b32 s{sRot}, s5, 5\ns_lshl_b32 s6, s{sR}, 8\ns_add_u32 s{sRot}, s{sRot}, s6\ns_and_b32 s{sRot}, s{sRot}, 511")
    A(f"s_mul_i32 s{sRing}, s{sW}, {R*2048}\ns_add_u32 s{sRing}, s{sRing}, {RB}")
    A(f"v_and_b32 v{t0+2}, 2, v{t0+1}\nv_lshlrev_b32 v{t0+2}, 1, v{t0+2}")
    A(f"v_and_b32 v{t0+3}, 4, v{t0+1}\nv_lshrrev_b32 v{t0+3}, 1, v{t0+3}")
    A(f"v_or_b32 v{t0+2}, v{t0+2}, v{t0+3}")
    A(f"v_and_b32 v{t0+3}, 7, v{vL}")
    A(f"v_xor_b32 v{t0+2}, v{t0+2}, v{t0+3}\nv_lshlrev_b32 v{t0+2}, 4, v{t0+2}")
    A(f"v_lshl_add_u32 v{vXo}, v{t0+1}, 13, v{t0+2}")
    A(f"v_lshl_add_u32 v{t0+2}, v{t0+1}, 10, v{t0+2}")
    A(f"s_lshl_b32 s6, s{sR}, 9\ns_lshl_b32 s3, s{sW}, 7\ns_add_u32 s6, s6, s3")
    A(f"v_add_u32 v{vWo[0]}, s6, v{t0+2}")
    for j in range(1, 4):
        A(f"v_add_u32 v{vWo[j]}, {7168*j}, v{vWo[0]}")
    A(f"v_and_b32 v{vEmb}, 31, v{vL}\nv_lshl_add_u32 v{vEmb}, v{vEmb}, 2, s6")
    A(f"v_xor_b32 v{t0+3}, v{t0+3}, v{t0+1}\nv_lshlrev_b32 v{t0+3}, 4, v{t0+3}")
    A(f"v_lshl_add_u32 v{vOo}, v{t0+1}, 13, v{t0+3}")
    A(f"s_lshl_b32 s{sFo}, s2, 8\ns_lshl_b32 s3, s{sW}, 2\ns_add_u32 s{sFo}, s{sFo}, s3\ns_xor_b32 s{sFp}, s{sFo}, 0x800")
    A(f"s_lshl_b32 s{sSo}, s{sRot}, 10")
    A("s_waitcnt lgkmcnt(0)")
    def srd(d, p, n):
        A(f"s_mov_b32 s{d}, s{p}\ns_mov_b32 s{d+1}, s{p+1}\ns_mov_b32 s{d+2}, {n}\ns_mov_b32 s{d+3}, 0x20000")
    srd(12, 40, 0x80000)
    def wdma(step):
        srdn = 12 if step < 32 else 16
        A(f"s_add_u32 m0, s{sRing}, {(step % R) * 2048}")
        if step == 32: A(f"s_lshl_b32 s{sSo}, s{sR}, 18")
        elif step: A(f"s_add_u32 s{sSo}, s{sSo}, 32768\ns_and_b32 s{sSo}, s{sSo}, 0x7ffff")
        else: A("s_nop 0")
        for j in range(4):
            A.vmem(f"buffer_load_dwordx4 v{vWo[j]}, s[{srdn}:{srdn+3}], s{sSo} offen offset:{j*1024} lds", ("w", step + j // 2))
    wdma(0)
    srd(8, 36, 0x800000)
    A(f"s_lshl_b32 s5, s{sW}, 10")
    A(f"s_lshl_b32 s72, s{sRot}, 13")
    def xdma(i):
        A(f"s_add_u32 m0, s5, {i*4096}")
        A(f"s_add_u32 s6, s72, s{sXs}")
        A.vmem(f"buffer_load_dwordx4 v{vXo}, s[8:11], s6 offen{' nt' if XNT else ''} lds", ("x", i // 8))
        A(f"s_add_u32 s72, s72, {32*8192}\ns_and_b32 s72, s72, 0x3fffff")
    for i in range(8): xdma(i)
    A(f"s_load_dword s{sSig}, s[38:39], 0")
    A(f"s_load_dword s{sOA}, s[50:51], s{sFo}")
    A(f"s_load_dword s{sPA}, s[50:51], s{sFp}")
    A(f"s_add_u32 s3, s{sFo}, 128\ns_add_u32 s4, s{sFp}, 128")
    A(f"s_load_dword s{sOB}, s[50:51], s3")
    A(f"s_load_dword s{sPB}, s[50:51], s4")
    srd(16, 44, 0x80000); srd(20, 46, 0x800000); srd(24, 42, 1024); srd(64, 50, 0x10000)
    A.vmem(f"buffer_load_dword v{vEmb}, v{vEmb}, s[24:27], 0 offen", "emb")
    EX = "s[20:23]"
    if EXWS:
        A("s_add_u32 s36, s50, 0x1000000\ns_addc_u32 s37, s51, 0\ns_mov_b32 s38, 0x800000\ns_mov_b32 s39, 0x20000")
        EX = "s[36:39]"
    if TW:
        A(f"s_lshr_b32 s3, s2, 3\ns_lshl_b32 s3, s3, 2\ns_add_u32 s3, s3, s{sW}\ns_lshl_b32 s3, s3, 12")
        A(f"v_and_b32 v{vT}, 31, v{vL}\nv_lshlrev_b32 v{vT}, 7, v{vT}")
        A.vmem(f"buffer_load_dword v{t0+7}, v{vT}, s[16:19], s3 offen", "touch")
    if TC:
        A("s_getpc_b64 s[74:75]")
        A(f"s_lshr_b32 s3, s2, 3\ns_lshl_b32 s3, s3, 2\ns_add_u32 s3, s3, s{sW}\ns_lshl_b32 s3, s3, 7")
        A(f"s_load_dword s73, s[74:75], s3")
        A(f"s_add_u32 s3, s3, 64")
        A(f"s_load_dword s73, s[74:75], s3")
    if TE:
        A(f"v_lshlrev_b32 v{vT}, 13, v{vL}")
        A.vmem(f"buffer_load_dword v{t0+7}, v{vT}, {EX}, s{sPar} offen", "touch")
    for s in range(2, X2, 2): wdma(s)
    for i in range(8, 16): xdma(i)
    for s in range(max(X2, 2), R, 2): wdma(s)
    r_, cc, gam, hi, c2, u = t0, t0+1, t0+2, t0+3, t0+4, t0+5
    A(f"v_lshrrev_b32 v{r_}, 2, v{vL}\nv_and_b32 v{r_}, 3, v{r_}")
    A(f"v_and_b32 v{cc}, 3, v{vL}")
    A(f"v_lshrrev_b32 v{gam}, 4, v{vL}\nv_and_b32 v{gam}, 1, v{gam}")
    A(f"v_lshrrev_b32 v{hi}, 5, v{vL}")
    A(f"v_lshrrev_b32 v{c2}, 1, v{cc}")
    A(f"v_lshl_add_u32 v{c2}, v{gam}, 1, v{c2}")
    A(f"v_and_b32 v{u}, 2, v{r_}\nv_lshlrev_b32 v{u}, 1, v{u}")
    A(f"v_lshl_add_u32 v{u}, v{hi}, 1, v{u}")
    A(f"v_xor_b32 v{c2}, v{c2}, v{u}")
    A(f"v_and_b32 v{cc}, 1, v{cc}\nv_lshlrev_b32 v{cc}, 3, v{cc}")
    A(f"v_lshl_add_u32 v{cc}, v{c2}, 4, v{cc}")
    A(f"v_lshl_add_u32 v{gam}, v{hi}, 2, v{r_}")
    A(f"v_lshl_add_u32 v{vX[0]}, v{gam}, 7, v{cc}")
    A(f"v_xor_b32 v{vX[1]}, 64, v{vX[0]}")
    A(f"v_add_u32 v{vA[0]}, s{sRing}, v{vX[0]}")
    A(f"v_add_u32 v{vA[1]}, s{sRing}, v{vX[1]}")
    A(f"v_lshlrev_b32 v{vH}, 4, v{vL}")
    A(f"s_lshl_b32 s3, s{sW}, 13")
    A(f"v_add_u32 v{vHw}, s3, v{vH}")
    A(f"v_add_u32 v{vLin}, s{sRing}, v{vH}")
    A(f"v_and_b32 v{r_}, 31, v{vL}")
    A(f"v_and_b32 v{cc}, 2, v{r_}\nv_lshlrev_b32 v{cc}, 5, v{cc}")
    A(f"v_and_b32 v{c2}, 4, v{r_}\nv_lshlrev_b32 v{c2}, 3, v{c2}")
    A(f"v_or_b32 v{cc}, v{cc}, v{c2}")
    A(f"v_lshl_add_u32 v{cc}, v{hi}, 3, v{cc}")
    A(f"v_lshl_add_u32 v{cc}, v{r_}, 7, v{cc}")
    A(f"s_lshl_b32 s3, s{sW}, 6\ns_lshl_b32 s4, s{sR}, 8\ns_add_u32 s3, s3, s4\ns_sub_u32 s3, s3, s{sRot}")
    for tau in range(2):
        A(f"s_add_u32 s4, s3, {32*tau}\ns_and_b32 s4, s4, 511\ns_lshl_b32 s4, s4, 7")
        A(f"v_add_u32 v{vRes[tau]}, s4, v{cc}")
    A(f"v_and_b32 v{cc}, 7, v{r_}\nv_lshlrev_b32 v{cc}, 4, v{cc}")
    A(f"v_lshl_add_u32 v{cc}, v{hi}, 3, v{cc}")
    A(f"v_lshl_add_u32 v{cc}, v{r_}, 7, v{cc}")
    A(f"v_add_u32 v{vSt}, s{sRing}, v{cc}")
    A(f"s_getreg_b32 s{sXcc}, hwreg(HW_REG_XCC_ID)")
    A(f"s_and_b32 s{sXcc}, s{sXcc}, 15")
    A("s_waitcnt lgkmcnt(0)")
    consts(A, sSig, sB, hp, sK1, sK, sSkip, vNoise)
    A.wait(vm="emb")
    A(f"v_lshlrev_b32 v{hp}, 16, v{vEmb}")
    A(f"v_and_b32 v{hp+1}, 0xffff0000, v{vEmb}")
    A(f"v_mul_f32 v{hp}, v{hp}, v{vNoise}")
    A(f"v_mul_f32 v{hp+1}, v{hp+1}, v{vNoise}")
    A(f"v_cvt_pk_bf16_f32 v{hp+2}, v{hp}, v{hp+1}")
    A(f"v_lshlrev_b32 v{hp}, 16, v{hp+2}")
    A(f"v_and_b32 v{hp+1}, 0xffff0000, v{hp+2}")
    A(f"v_mul_f32 v{hp}, 0xbfb8aa3b, v{hp}")
    A(f"v_mul_f32 v{hp+1}, 0xbfb8aa3b, v{hp+1}")
    A(f"v_lshlrev_b32 v{vBr}, 3, v{hi}")
    for tau in range(2):
        for q in range(4):
            for j in range(4):
                b = bias + tau*16 + q*4 + j
                A.lds(f"ds_bpermute_b32 v{b}, v{vBr}, v{hp + (j & 1)} offset:{(16*tau + 4*q + (j >> 1)) * 4}", "br")
    A(f"s_add_u32 s{sOA}, s{sOA}, 16\ns_and_b32 s{sOA}, s{sOA}, 0xfffffff0\ns_or_b32 s{sOA}, s{sOA}, s{sXcc}")
    A(f"s_mov_b32 s{sSlow}, 0")
    A.wait(vm=("x", 0), lg="all")
    A("s_barrier")
    stamp()

    def frag_reads(step):
        fb = (step & 1) * 16
        out = []
        w = [f"ds_read_b64_tr_b16 a[{fb+4*tau+2*rho}:{fb+4*tau+2*rho+1}], v{vA[tau]} offset:{(step % R)*2048 + rho*1024}" for tau in range(2) for rho in range(2)]
        if step < 32:
            p = [f"ds_read_b64_tr_b16 a[{fb+8+4*t+2*rho}:{fb+8+4*t+2*rho+1}], v{vX[t]} offset:{step*2048 + rho*1024}" for t in range(2) for rho in range(2)]
            return p[0:2] + w[0:2] + p[2:4] + w[2:4]
        p = [f"ds_read_b128 a[{fb+8+4*t}:{fb+8+4*t+3}], v{vH} offset:{((step-32)*2+t)*1024}" for t in range(2)]
        return p[0:1] + w[0:2] + p[1:2] + w[2:4]
    def mfmas(step):
        fb = (step & 1) * 16
        out = []
        for tau, t in ((0, 0), (0, 1), (1, 0), (1, 1)):
            w = f"a[{fb+4*tau}:{fb+4*tau+3}]"; p = f"a[{fb+8+4*t}:{fb+8+4*t+3}]"
            if step < 32:
                d = acc1 + 16*(2*tau+t)
                c = "0" if step == 0 else f"v[{d}:{d+15}]"
                out.append(f"v_mfma_f32_32x32x16_bf16 v[{d}:{d+15}], {w}, {p}, {c}")
            else:
                d = acc2 + 16*(2*tau+t)
                out.append(f"v_mfma_f32_32x32x16_bf16 v[{d}:{d+15}], {p}, {w}, v[{d}:{d+15}]")
        return out
    res_items = [(tau, t, q) for tau in range(2) for t in range(2) for q in range(4)]
    def res_read(it):
        tau, t, q = it
        b = hp + ((tau*2+t)*4+q)*2
        A(f"v_xor_b32 v{t0 + (q & 1)}, {(4*t+q) << 4}, v{vRes[tau]}")
        A.lds(f"ds_read_b64 v[{b}:{b+1}], v{t0 + (q & 1)}", "res")
    def res_valu(it):
        tau, t, q = it
        b = hp + ((tau*2+t)*4+q)*2
        d = acc2 + 16*(2*tau+t) + 4*q
        return [f"v_lshlrev_b32 v{d}, 16, v{b}", f"v_and_b32 v{d+1}, 0xffff0000, v{b}",
                f"v_lshlrev_b32 v{d+2}, 16, v{b+1}", f"v_and_b32 v{d+3}, 0xffff0000, v{b+1}",
                f"v_mul_f32 v{d}, s{sSkip}, v{d}", f"v_mul_f32 v{d+1}, s{sSkip}, v{d+1}",
                f"v_mul_f32 v{d+2}, s{sSkip}, v{d+2}", f"v_mul_f32 v{d+3}, s{sSkip}, v{d+3}"]
    def hook(s, A):
        if s == FLAGS:
            A.wait(vm="hst")
            A(f"v_mov_b32 v{vFl}, s{sOA}")
            A("s_mov_b64 exec, 1")
            A.vmem(f"buffer_store_dword v{vFl}, off, s[64:67], s{sFo}", "flag")
            A("s_mov_b64 exec, -1")
            stamp()
        if s == POLLS:
            A("s_mov_b64 exec, 1")
            A.vmem(f"buffer_load_dword v{vPoll}, off, s[64:67], s{sFp} sc1", "poll")
            A("s_mov_b64 exec, -1")
        if s == CHKS:
            A.wait(vm="poll")
            A(f"v_readfirstlane_b32 s3, v{vPoll}")
            A(f"s_cmp_eq_u32 s3, s{sPA}")
            A("s_cbranch_scc1 Lretry")
            A(f"s_and_b32 s3, s3, 15")
            A(f"s_cmp_lg_u32 s3, s{sXcc}")
            A("s_cbranch_scc1 Lretry")
            if FORCESLOW: A("s_branch Lretry")
            A("Lgot:")
            stamp()
            A(f"s_mov_b32 s6, s{sOut}")
            A(f"s_lshl_b32 s3, s{sW}, 13")
            for i in range(8):
                A(f"s_add_u32 m0, s3, {32768 + i*1024}")
                if i: A(f"s_add_u32 s6, s6, {8*8192}")
                else: A("s_nop 0")
                A.vmem(f"buffer_load_dwordx4 v{vOo}, {EX}, s6 offen sc1{' nt' if PNT else ''} lds", "pay")
            A(f"v_add_u32 v{vFl}, 16, v{vFl}")
            A("s_mov_b64 exec, 1")
            A.vmem(f"buffer_store_dword v{vFl}, off, s[64:67], s{sFo}", "flag")
            A("s_mov_b64 exec, -1")
    def gemm(s0, s1):
        A.wait(vm=("w", s0))
        for x in frag_reads(s0): A.lds(x, ("f", s0))
        for s in range(s0, s1):
            nxt = s + 1 < s1
            A.wait(lg="all")
            if s == 31:
                A("s_barrier")
            m = mfmas(s)
            A(m[0])
            if s % 2 == 1 and s - 1 + R < 64: wdma(s - 1 + R)
            hook(s, A)
            if s == 15:
                A.wait(vm=("x", 1)); A("s_barrier")
            if s == 47:
                A.wait(vm="pay"); A("s_barrier"); stamp()
            if nxt: A.wait(vm=("w", s + 1))
            rd = frag_reads(s + 1) if nxt else []
            fill = []
            if 17 <= s < 25:
                for it in res_items[2*(s-17):2*(s-17)+2]: res_read(it)
            if 18 <= s < 26:
                for it in res_items[2*(s-18):2*(s-18)+2]: fill += res_valu(it)
            k = 0; kf = 0
            for i in range(1, 4):
                n = (len(rd) * i) // 3
                for x in rd[k:n]: A.lds(x, ("f", s + 1))
                k = n
                n = (len(fill) * i) // 4
                for x in fill[kf:n]: A(x)
                kf = n
                A(m[i])
            for x in fill[kf:]: A(x)
    gemm(0, 32)
    stamp()
    A("s_nop 15")
    A(f"s_mov_b32 s6, s{sPar}")
    n = 0
    for tau in range(2):
        for half in range(2):
            for t in range(2):
                a0 = acc1 + (2*tau+t)*16 + half*8; b0 = bias + tau*16 + half*8; e0 = tmp + (n & 1) * 8
                A.raw(".p2align 3")
                for p in range(4):
                    A(f"v_pk_fma_f32 v[{a0+2*p}:{a0+2*p+1}], v[{a0+2*p}:{a0+2*p+1}], s[{sK1}:{sK1+1}], v[{b0+2*p}:{b0+2*p+1}]")
                for p in range(8):
                    A(f"v_exp_f32 v{e0+p}, v{a0+p}")
                for p in range(4):
                    A(f"v_pk_fma_f32 v[{e0+2*p}:{e0+2*p+1}], v[{e0+2*p}:{e0+2*p+1}], s[{sK}:{sK+1}], s[{sK}:{sK+1}]")
                for p in range(8):
                    A(f"v_rcp_f32 v{e0+p}, v{e0+p}")
                for p in range(4):
                    A(f"v_pk_mul_f32 v[{a0+2*p}:{a0+2*p+1}], v[{a0+2*p}:{a0+2*p+1}], v[{e0+2*p}:{e0+2*p+1}]")
                h = hp + n*4
                for p in range(4):
                    A(f"v_cvt_pk_bf16_f32 v{h+p}, v{a0+2*p}, v{a0+2*p+1}")
                A.vmem(f"buffer_store_dwordx4 v[{h}:{h+3}], v{vOo}, {EX}, s6 offen", "hst")
                A.lds(f"ds_write_b128 v{vHw}, v[{h}:{h+3}] offset:{n*1024}", "hw")
                if n < 7: A(f"s_add_u32 s6, s6, {8*8192}")
                n += 1
    A.wait(lg="all")
    A("s_barrier")
    stamp()
    gemm(32, 64)
    stamp()
    A("s_nop 15")
    for tau in range(2):
        for t in range(2):
            for q in range(4):
                b = hp + ((tau*2+t)*4+q)*2
                d = acc2 + 16*(2*tau+t) + 4*q
                if tau == 0: A(f"v_xor_b32 v{tmp+4*t+q}, {(4*t+q) << 4}, v{vSt}")
                A(f"v_cvt_pk_bf16_f32 v{b}, v{d}, v{d+1}")
                A(f"v_cvt_pk_bf16_f32 v{b+1}, v{d+2}, v{d+3}")
                A.lds(f"ds_write_b64 v{tmp+4*t+q}, v[{b}:{b+1}] offset:{tau*4096}", ("ow", tau))
        for i in range(4*tau, 4*tau+4):
            A.lds(f"ds_read_b128 v[{acc1+4*i}:{acc1+4*i+3}], v{vLin} offset:{i*1024}", ("o", i))
    A(f"s_mov_b32 s6, s{sOut}")
    of = {0: "", 1: " nt", 2: " sc1", 3: " sc0 sc1", 4: " sc1 nt"}[ONT]
    if STAMP: A("s_waitcnt lgkmcnt(0)")
    for i in range(8):
        A.wait(lg=[("o", i)])
        A.vmem(f"buffer_store_dwordx4 v[{acc1+4*i}:{acc1+4*i+3}], v{vOo}, s[20:23], s6 offen{of}", "st")
        if i < 7: A(f"s_add_u32 s6, s6, {8*8192}")
    if STAMP:
        A("s_waitcnt vmcnt(0)")
        stamp()
        A("s_memrealtime s[98:99]")
        A("s_waitcnt lgkmcnt(0)")
        A("s_mov_b32 s66, 0x10000000")
        assert len(stamps) <= 10, len(stamps)
        for i in range(14):
            A(f"v_mov_b32 v{32+i}, s{stamps[i]}" if i < len(stamps) else f"v_mov_b32 v{32+i}, s{stamps[-1]}")
        A("v_mov_b32 v46, s96\nv_mov_b32 v47, s98")
        A(f"s_lshl_b32 s3, s2, 2\ns_add_u32 s3, s3, s{sW}\ns_lshl_b32 s3, s3, 6\ns_add_u32 s3, s3, 0x100000")
        A("s_mov_b64 exec, 1")
        for i in range(4):
            A(f"buffer_store_dwordx4 v[{32+4*i}:{35+4*i}], off, s[64:67], s3 offset:{16*i}")
    A("Lend:")
    A("s_endpgm")
    A("Lretry:")
    A(f"s_mov_b32 s{sCnt}, 0")
    A("s_mov_b64 exec, 1")
    A("Lr_loop:")
    A(f"buffer_load_dword v{vPoll}, off, s[64:67], s{sFp} sc1")
    A(f"buffer_load_dword v{t0+6}, off, s[64:67], s{sFp} offset:128 sc1")
    A(f"s_add_u32 s{sCnt}, s{sCnt}, 1")
    A("s_waitcnt vmcnt(0)")
    A(f"v_readfirstlane_b32 s3, v{vPoll}")
    A(f"v_readfirstlane_b32 s4, v{t0+6}")
    A(f"s_cmp_eq_u32 s3, s{sPA}")
    A("s_cbranch_scc1 Lr_noa")
    A(f"s_and_b32 s3, s3, 15")
    A(f"s_cmp_eq_u32 s3, s{sXcc}")
    if not FORCESLOW: A("s_cbranch_scc1 Lr_done")
    A("s_branch Lr_slow")
    A("Lr_noa:")
    A(f"s_cmp_lg_u32 s4, s{sPB}")
    A("s_cbranch_scc1 Lr_slow")
    A(f"s_cmp_lt_u32 s{sCnt}, 16")
    A("s_cbranch_scc1 Lr_loop")
    A("Lr_slow:")
    A(f"s_cmp_lg_u32 s{sSlow}, 0")
    A("s_cbranch_scc1 Lr_chk")
    A(f"s_mov_b32 s{sSlow}, 1")
    A("buffer_wbl2 sc1")
    A("s_waitcnt vmcnt(0)")
    A(f"s_add_u32 s{sOB}, s{sOB}, 1")
    A(f"v_mov_b32 v{t0+7}, s{sOB}")
    A(f"buffer_store_dword v{t0+7}, off, s[64:67], s{sFo} offset:128 sc1")
    A("Lr_chk:")
    A(f"s_cmp_lg_u32 s4, s{sPB}")
    A("s_cbranch_scc1 Lr_viab")
    A(f"s_cmp_lt_u32 s{sCnt}, 0x100000")
    A("s_cbranch_scc1 Lr_loop")
    A("Lr_viab:")
    A("buffer_inv sc1")
    A("Lr_done:")
    A(f"s_cmp_eq_u32 s{sSlow}, 0")
    A("s_cbranch_scc1 Lr_out")
    A(f"s_add_u32 s{sOB}, s{sOB}, 1")
    A(f"v_mov_b32 v{t0+7}, s{sOB}")
    A(f"buffer_store_dword v{t0+7}, off, s[64:67], s{sFo} offset:128 sc1")
    A("Lr_out:")
    A("s_waitcnt vmcnt(0)")
    A("s_mov_b64 exec, -1")
    A("s_branch Lgot")
    A.raw(".fill 4096, 4, 0xbf800000")
    return wrap(A.text(), 256, 256, 163840, 288, 256)

if __name__ == "__main__":
    kw = dict(a.split("=") for a in sys.argv[2:])
    kw = {k: int(v) for k, v in kw.items()}
    open(sys.argv[1], "w").write(gen(**kw))
```

```python
import sys
from asmlib import *
from gen_a import consts
NSTAMP = 10
NWAVES = 8
NAMES = []
SETS = [
    {"g1", "Bh", "pB20", "B20", "g2", "te", "flag0", "flag1", "got0", "got1", "B26"},
    {"pB0", "B0", "g1", "pBh", "Bh", "flag0", "got0"},
    {"ka", "iss0", "pB0", "B0", "B1", "B2", "B4", "B8"},
    {"g2a", "g2", "e1", "e2", "e3", "B31", "B28"},
    {"pB21", "B21", "pB22", "B22", "pB23", "B23", "pB24", "B24"},
    {"pB11", "B11", "pB12", "B12", "pB14", "B14", "pB15", "B15"},
]

def gen(ONT=0, TC=1, STAMP=0, SSET=0, LOOK=3, LOOK0=4, T1=4, T2=4, TE=4, SP=0, FORCESLOW=0, PRIO=0, EPI=4,
        F0=6, F1=35, WPRE=0, WMAX=23, P0=3, PJ=22):
    NAMES.clear()
    NS = 10
    RING = NS * 4096
    EXOFF = 0x100000 * 4
    A = Asm()
    sW, sB, sR, sTile = 28, 29, 30, 31
    def stamp(A, name="end"):
        if STAMP and (name in SETS[SSET] or name in ("start", "end")):
            s = 76 + 2 * len(A.stamps); A.stamps.append(s); A.names.append(name)
            A(f"s_memtime s[{s}:{s+1}]" if STAMP == 1 else f"s_memrealtime s[{s}:{s+1}]")
    def dump(A):
        if not STAMP: return
        A("s_waitcnt vmcnt(0)")
        stamp(A)
        A("s_memrealtime s[98:99]")
        A("s_waitcnt lgkmcnt(0)")
        A("s_mov_b32 s64, s50\ns_mov_b32 s65, s51\ns_mov_b32 s66, 0x10000000\ns_mov_b32 s67, 0x20000")
        st = A.stamps
        NAMES.append(list(A.names))
        assert len(st) <= 10, len(st)
        for i in range(14):
            A(f"v_mov_b32 v{32+i}, s{st[min(i, len(st)-1)]}")
        A("v_mov_b32 v46, s96\nv_mov_b32 v47, s98")
        A(f"s_lshl_b32 s3, s2, 3\ns_add_u32 s3, s3, s{sW}\ns_lshl_b32 s3, s3, 6\ns_add_u32 s3, s3, 0x100000")
        A("s_mov_b64 exec, 1")
        for i in range(4):
            A(f"buffer_store_dwordx4 v[{32+4*i}:{35+4*i}], off, s[64:67], s3 offset:{16*i}")
    def srd(A, d, p, n):
        A(f"s_mov_b32 s{d}, s{p}\ns_mov_b32 s{d+1}, s{p+1}\ns_mov_b32 s{d+2}, {n}\ns_mov_b32 s{d+3}, 0x20000")
    def bar(A, name):
        stamp(A, "p" + name); A("s_barrier"); stamp(A, name); A.bars.append(name)
    def seg2(j):
        if j < 20: return 0, j - 16
        b, i = (j - 20) // 6, (j - 20) % 6
        if b == 0: return i // 2 + 1, (i % 2) * 2
        return i % 3 + 1, 1 + (i // 3) * 2
    A.stamps = []; A.names = []; A.bars = []
    stamp(A, "start")
    if STAMP: A("s_memrealtime s[96:97]")
    vL = 1
    A("s_load_dwordx16 s[36:51], s[0:1], 0")
    A("s_cmp_ge_u32 s2, 256")
    A("s_cbranch_scc1 Lend")
    A(f"v_lshrrev_b32 v2, 6, v0")
    A(f"v_and_b32 v{vL}, 63, v0")
    A(f"v_readfirstlane_b32 s{sW}, v2")
    A(f"s_bfe_u32 s{sR}, s2, 0x20003\ns_lshr_b32 s5, s2, 5\ns_and_b32 s3, s2, 7")
    A("s_lshl_b32 s6, s5, 3\ns_add_u32 s3, s3, s6")
    A(f"s_lshr_b32 s{sB}, s3, 5\ns_and_b32 s3, s3, 31\ns_lshl_b32 s3, s3, 8")
    A(f"s_lshl_b32 s6, s{sB}, 22\ns_add_u32 s{sTile}, s3, s6")
    A(f"s_cmp_lt_u32 s{sW}, 4")
    A("s_cbranch_scc1 Lcons")
    vO = [4, 5, 6, 7]; vT, vLin, vFo, vBase, vNew, vD, vBv = 8, 9, 16, 17, 18, 19, 20
    sRing, sSo, sStep, sMask, sBase, sSh, sH = 32, 33, 34, 35, 52, 53, 54
    sXcc, sCnt, sSlow, sWhich = 24, 25, 26, 27
    A(f"s_and_b32 s{sH}, s{sW}, 1")
    A(f"s_lshl_b32 s4, s{sR}, 8")
    A(f"s_cmp_lt_u32 s{sW}, 6")
    A(f"s_cselect_b32 s{sSh}, 13, 10")
    A(f"s_cselect_b32 s{sBase}, s{sTile}, s4")
    A(f"s_lshl_b32 s3, s{sH}, 7\ns_add_u32 s{sBase}, s{sBase}, s3")
    A(f"s_sub_u32 s3, s{sW}, 4\ns_mul_i32 s{sRing}, s3, {RING}")
    A(f"s_lshl_b32 s{sStep}, 32, s{sSh}")
    A(f"s_lshl_b32 s{sMask}, 0x200, s{sSh}\ns_sub_u32 s{sMask}, s{sMask}, 1")
    A(f"s_lshl_b32 s{sSo}, s{sR}, 7\ns_lshl_b32 s{sSo}, s{sSo}, s{sSh}")
    A(f"v_lshrrev_b32 v2, 3, v{vL}")
    A(f"v_and_b32 v3, 2, v2\nv_lshlrev_b32 v3, 1, v3")
    A(f"v_and_b32 v11, 4, v2\nv_lshrrev_b32 v11, 1, v11")
    A(f"v_and_b32 v12, 7, v{vL}")
    A(f"v_xor_b32 v3, v3, v11\nv_xor_b32 v3, v3, v12")
    A(f"v_lshlrev_b32 v2, s{sSh}, v2")
    A(f"v_lshl_add_u32 v3, v3, 4, v2")
    A(f"v_add_u32 v{vO[0]}, s{sBase}, v3")
    A(f"s_lshl_b32 s3, 8, s{sSh}\ns_sub_u32 s3, s3, 1024")
    for j in range(1, 4):
        A(f"v_add_u32 v{vO[j]}, s3, v{vO[j-1]}")
    A(f"s_mov_b32 m0, s{sRing}")
    A(f"s_cmp_lt_u32 s{sW}, 6")
    A("s_mov_b32 s14, 0x80000\ns_cselect_b32 s10, 0x800000, s14")
    A("s_mov_b32 s11, 0x20000")
    A("s_waitcnt lgkmcnt(0)")
    A("s_cselect_b32 s8, s36, s40\ns_cselect_b32 s9, s37, s41")
    stamp(A, "ka")
    def seg(A, j):
        if j: A(f"s_add_u32 m0, s{sRing}, {(j % NS) * 4096}")
        if 0 < j < 16: A(f"s_add_u32 s{sSo}, s{sSo}, s{sStep}\ns_and_b32 s{sSo}, s{sSo}, s{sMask}")
        if j >= 16:
            k, sg = seg2(j)
            A(f"s_add_u32 s{sSo}, s{sStep}, {(128*k + 32*sg) * 1024}\ns_and_b32 s{sSo}, s{sSo}, 0x7ffff")
        srdn = 8 if j < 16 else 16
        for i in range(4):
            A.vmem(f"buffer_load_dwordx4 v{vO[i]}, s[{srdn}:{srdn+3}], s{sSo} offen offset:{i*1024} lds", ("s", j))
    def setup_touch(A):
        A(f"v_and_b32 v{vT}, 31, v{vL}\nv_lshlrev_b32 v{vT}, 7, v{vT}")
        A(f"s_lshr_b32 s7, s2, 3\ns_lshl_b32 s7, s7, 2\ns_add_u32 s7, s7, s{sW}\ns_sub_u32 s7, s7, 4\ns_lshl_b32 s7, s7, 12")
        A("s_mov_b32 s12, s40\ns_mov_b32 s13, s41\ns_mov_b32 s15, 0x20000")
        srd(A, 16, 44, 0x80000)
    def setup_flags(A):
        srd(A, 64, 50, 0x10000)
        A(f"v_lshrrev_b32 v2, 2, v{vL}\nv_add_u32 v2, s{sR}, v2\nv_and_b32 v2, 3, v2\nv_lshlrev_b32 v2, 11, v2")
        A(f"v_and_b32 v3, 3, v{vL}\nv_cmp_eq_u32 vcc, 3, v3\nv_lshlrev_b32 v3, 2, v3")
        A(f"s_andn2_b32 s3, s2, 24\ns_lshl_b32 s3, s3, 8\ns_lshl_b32 s4, s{sH}, 4\ns_add_u32 s3, s3, s4")
        A(f"v_mov_b32 v11, 128\nv_cndmask_b32 v3, v3, v11, vcc")
        A(f"v_add3_u32 v{vFo}, v2, v3, s3")
        A("s_mov_b64 exec, 0xffff")
        A.vmem(f"buffer_load_dword v{vBase}, v{vFo}, s[64:67], 0 offen sc1", "base")
        A("s_mov_b64 exec, -1")
        A(f"s_add_u32 s40, s50, {EXOFF}\ns_addc_u32 s41, s51, 0\ns_mov_b32 s42, 0x800000\ns_mov_b32 s43, 0x20000")
        A(f"s_lshl_b32 s6, s2, 15\ns_lshl_b32 s3, s{sH}, 14\ns_add_u32 s6, s6, s3")
        if SP:
            A(f"s_lshr_b32 s3, s{sW}, 1\ns_and_b32 s3, s3, 1\ns_lshl_b32 s3, s3, 11\ns_add_u32 s3, s3, s6\ns_add_u32 s3, s3, 12288")
            A("s_add_u32 s36, s40, s3\ns_addc_u32 s37, s41, 0")
    spn = [0]
    def sp(A, n):
        for _ in range(n):
            if spn[0] < 16:
                A(f"s_load_dword s38, s[36:37], {spn[0]*128}\ns_load_dword s39, s[36:37], {spn[0]*128+64}"); spn[0] += 1
    def extras(A, j):
        if j == T1: A.vmem(f"buffer_load_dword v13, v{vT}, s[12:15], s7 offen", "touch")
        if j == T2: A.vmem(f"buffer_load_dword v13, v{vT}, s[16:19], s7 offen", "touch")
    if T1 == 0 or T2 == 0: setup_touch(A)
    for j in range(LOOK0):
        extras(A, j); seg(A, j)
        if j == 0 and not (T1 == 0 or T2 == 0): setup_touch(A)
        if j == 1: setup_flags(A)
    extras(A, LOOK0)
    stamp(A, "iss0")
    nxt = LOOK0
    j = 0
    while nxt < 16:
        A.wait(vm=("s", j)); bar(A, f"B{j}")
        if j + LOOK >= nxt:
            seg(A, nxt); nxt += 1; extras(A, nxt)
        if SP and j >= 4: sp(A, 1)
        j += 1
    jsplit = j
    A(f"s_cmp_ge_u32 s{sW}, 6")
    A("s_cbranch_scc1 Lwload")
    split = (list(A.vm), list(A.stamps), list(A.names), list(A.bars)); spsplit = spn[0]
    A(f"s_getreg_b32 s{sXcc}, hwreg(HW_REG_XCC_ID)")
    A(f"v_lshlrev_b32 v{vLin}, 4, v{vL}")
    A(f"s_and_b32 s{sXcc}, s{sXcc}, 15")
    A(f"v_add_u32 v{vD}, 64, v{vBase}\nv_and_b32 v{vD}, 0xffffffc0, v{vD}\nv_or_b32 v{vD}, s{sXcc}, v{vD}")
    A(f"v_mov_b32 v{vBv}, v{vBase}")
    A(f"s_mov_b32 s{sSlow}, 0")
    A(f"s_or_b32 s55, s{sXcc}, 16")
    for k in range(1, 4):
        A(f"s_add_u32 s3, s6, {k << 18}\ns_and_b32 s3, s3, 0xc0000\ns_andn2_b32 s4, s6, 0xc0000\ns_or_b32 s{46+k}, s3, s4")
    for j in range(jsplit, 16):
        A.wait(vm=("s", j)); bar(A, f"B{j}")
        if SP: sp(A, 1)
    if SP: sp(A, 16)
    A("s_mov_b64 exec, 0x3330")
    A(f"s_mov_b32 s{sCnt}, 0")
    bar(A, "Bh")
    def poll(A): A.vmem(f"buffer_load_dword v{vNew}, v{vFo}, s[64:67], 0 offen sc1", "poll")
    def check(A, b):
        A(f"v_cmp_ne_u32 vcc, v{vNew}, v{vBase}")
        A(f"v_and_b32 v21, {15 + 16*b}, v{vNew}")
        A(f"v_cmp_eq_u32 s[44:45], s{55 if b else sXcc}, v21")
        A("s_and_b32 s44, s44, vcc_lo")
        A("s_cmp_eq_u32 s44, 0x3330")
    A("Lsp:")
    poll(A)
    A(f"s_add_u32 s{sCnt}, s{sCnt}, 1")
    A(f"s_cmp_gt_u32 s{sCnt}, {0 if FORCESLOW else 12}")
    A("s_cbranch_scc1 Lretry0")
    A.wait(vm="all")
    check(A, 0)
    A("s_cbranch_scc0 Lsp")
    A("Lgot0:")
    A("s_mov_b64 exec, -1")
    stamp(A, "got0")
    def pay(A, j):
        k, sg = seg2(j)
        A(f"s_add_u32 m0, s{sRing}, {(j % NS) * 4096}")
        A(f"s_add_u32 s6, s{46+k}, {sg*4096}")
        for i in range(4):
            A.vmem(f"buffer_load_dwordx4 v{vLin}, s[40:43], s6 offen offset:{i*1024} sc1 lds", ("s", j))
    nxt = 20
    for _ in range(P0): pay(A, nxt); nxt += 1
    for j in range(20, 32):
        A.wait(vm=("s", j)); bar(A, f"B{j}")
        if j == 20:
            A("s_mov_b64 exec, 4")
            A.vmem(f"buffer_store_dword v{vD}, v{vFo}, s[64:67], 0 offen", "flag")
            A("s_mov_b64 exec, -1")
        if j == PJ:
            A("s_mov_b64 exec, 0x3330"); poll(A); A("s_mov_b64 exec, -1")
        if j == PJ + 1:
            while nxt < 26: pay(A, nxt); nxt += 1
            A.wait(vm="poll")
            A("s_mov_b64 exec, 0x3330")
            check(A, 1)
            A("s_branch Lretry1" if FORCESLOW else "s_cbranch_scc0 Lretry1")
            A("Lgot1:")
            A("s_mov_b64 exec, -1")
            stamp(A, "got1")
        n = 0
        while nxt < (26 if j <= PJ else 32) and nxt - NS <= j - 2 and n < (1 if j <= PJ else 2):
            pay(A, nxt); nxt += 1; n += 1
    assert nxt == 32
    barsP = list(A.bars)
    if SP: A("s_waitcnt lgkmcnt(0)")
    dump(A)
    A("s_endpgm")
    cold0 = len(A.L)
    A("Lretry0:")
    A(f"s_mov_b32 s{sWhich}, 0xffff")
    A("s_branch Lretry")
    A("Lretry1:")
    A(f"s_mov_b32 s{sWhich}, 0")
    A("Lretry:")
    A(f"s_mov_b32 s{sCnt}, 0")
    A("Lr_loop:")
    A("s_mov_b64 exec, 0xffff")
    A(f"buffer_load_dword v{vNew}, v{vFo}, s[64:67], 0 offen sc1")
    A(f"s_add_u32 s{sCnt}, s{sCnt}, 1")
    A("s_waitcnt vmcnt(0)")
    A(f"v_cmp_ne_u32 s[56:57], v{vNew}, v{vBase}")
    A(f"v_and_b32 v21, 15, v{vNew}")
    A(f"v_cmp_eq_u32 s[58:59], s{sXcc}, v21")
    A(f"v_and_b32 v21, 16, v{vNew}")
    A(f"v_cmp_ne_u32 s[60:61], 0, v21")
    if FORCESLOW: A("s_mov_b32 s58, 0")
    A("s_and_b32 s44, s56, s58")
    A(f"s_or_b32 s45, s60, s{sWhich}\ns_and_b32 s45, s45, s44\ns_lshr_b32 s3, s45, 1\ns_and_b32 s45, s45, s3")
    A("s_lshr_b32 s3, s44, 2\ns_or_b32 s45, s45, s3")
    A("s_lshr_b32 s3, s56, 3\ns_or_b32 s45, s45, s3\ns_and_b32 s45, s45, 0x1110")
    A("s_andn2_b32 s3, s56, s58\ns_and_b32 s3, s3, 0x7770\ns_and_b32 s4, s56, 0x8880\ns_or_b32 s3, s3, s4")
    A(f"s_lshr_b32 s4, s{sCnt}, 4\ns_or_b32 s3, s3, s4")
    A("s_cbranch_scc0 Lr_chk")
    A(f"s_cmp_lg_u32 s{sSlow}, 0")
    A("s_cbranch_scc1 Lr_chk")
    A("s_and_b32 s3, s56, s60\ns_and_b32 s3, s3, 3\ns_cmp_lg_u32 s3, 3")
    A("s_cbranch_scc1 Lr_again")
    A(f"s_mov_b32 s{sSlow}, 1")
    A("buffer_wbl2 sc1")
    A("s_waitcnt vmcnt(0)")
    A(f"v_add_u32 v{vBv}, 1, v{vBv}")
    A("s_mov_b64 exec, 8")
    A(f"buffer_store_dword v{vBv}, v{vFo}, s[64:67], 0 offen sc1")
    A("Lr_chk:")
    A("s_cmp_eq_u32 s45, 0x1110")
    A("s_cbranch_scc1 Lr_done")
    A("Lr_again:")
    A(f"s_cmp_lt_u32 s{sCnt}, 0x100000")
    A("s_cbranch_scc1 Lr_loop")
    A("Lr_done:")
    A(f"s_cmp_eq_u32 s{sSlow}, 0")
    A("s_cbranch_scc1 Lr_out")
    A("buffer_inv sc1")
    A("s_mov_b64 exec, 8")
    A(f"v_add_u32 v{vBv}, 1, v{vBv}")
    A(f"buffer_store_dword v{vBv}, v{vFo}, s[64:67], 0 offen sc1")
    A("s_waitcnt vmcnt(0)")
    A("Lr_out:")
    A(f"s_cmp_eq_u32 s{sWhich}, 0")
    A("s_cbranch_scc1 Lgot1")
    A("s_branch Lgot0")
    coldtext = A.L[cold0:]; del A.L[cold0:]
    A("Lwload:")
    A.vm, A.stamps, A.names, A.bars = [list(x) for x in split]; A.lg = []; spn[0] = spsplit
    A(f"s_lshl_b32 s{sStep}, s{sR}, 17")
    A(f"v_lshrrev_b32 v14, 5, v{vL}\nv_lshl_add_u32 v12, v14, 13, v{vT}")
    def te(A):
        A.vmem(f"buffer_load_dword v13, v12, s[40:43], s6 offen", "te")
        if TE > 2:
            A("s_add_u32 s6, s6, 4096")
            A.vmem(f"buffer_load_dword v13, v{12 if TE == 4 else vT}, s[40:43], s6 offen", "te")
    nxt = 16
    if TE and WPRE == 0: te(A)
    for j in range(jsplit, 16):
        A.wait(vm=("s", j)); bar(A, f"B{j}")
        n = 0
        while nxt < 16 + (WPRE if TE else 4) and n < 2:
            seg(A, nxt); nxt += 1; n += 1
            if nxt == 16 + WPRE and TE: te(A)
        if SP: sp(A, 1)
    if SP: sp(A, 16)
    if TE: A.wait(vm="te"); stamp(A, "te")
    while nxt <= WMAX: seg(A, nxt); nxt += 1
    A.wait(vm=("s", 19)); bar(A, "Bh")
    for j in range(20, 32):
        A.wait(vm=("s", j)); bar(A, f"B{j}")
        if nxt < 32: seg(A, nxt); nxt += 1
    barsW = list(A.bars)
    if SP: A("s_waitcnt lgkmcnt(0)")
    dump(A)
    A("s_endpgm")
    A.raw(".p2align 6")
    A("Lcons:")
    A.vm = []; A.lg = []; A.stamps = A.stamps[:1]; A.names = A.names[:1]; A.bars = []
    acc1, acc2, bias, tmp = 24, 88, 152, 184
    vA = [2, 3]; vX = [4, 5]
    vH, vHw, vKey, vSt, vLin, vBr, vEmb, vNoise, vOo, vBw, vEx, vFl = 6, 7, 8, 9, 10, 11, 12, 13, 14, 15, 22, 23
    t0 = 16
    sWi, sWj, sPr, sWr, sOut = 32, 33, 34, 35, 59
    sK1, sK, sSkip, sSig = 52, 54, 56, 58
    if PRIO: A(f"s_setprio {PRIO}")
    A(f"s_and_b32 s{sWi}, s{sW}, 1\ns_lshr_b32 s{sWj}, s{sW}, 1")
    A(f"s_mul_i32 s{sPr}, s{sWj}, {RING}\ns_mul_i32 s{sWr}, s{sWi}, {RING}\ns_add_u32 s{sWr}, s{sWr}, {2*RING}")
    A(f"s_lshl_b32 s6, s{sR}, 8\ns_lshl_b32 s3, s{sWi}, 7\ns_add_u32 s6, s6, s3")
    A(f"v_and_b32 v{vEmb}, 31, v{vL}\nv_lshl_add_u32 v{vEmb}, v{vEmb}, 2, s6")
    A(f"s_lshl_b32 s6, s6, 12\ns_lshl_b32 s3, s{sWj}, 7\ns_add_u32 s6, s6, s3\ns_add_u32 s{sOut}, s6, s{sTile}")
    A(f"s_lshl_b32 s65, s2, 8\ns_lshl_b32 s3, s{sWj}, 4\ns_add_u32 s65, s65, s3\ns_lshl_b32 s3, s{sWi}, 2\ns_add_u32 s65, s65, s3")
    A("s_waitcnt lgkmcnt(0)")
    A(f"s_load_dword s{sSig}, s[38:39], 0")
    A(f"s_load_dword s66, s[50:51], s65")
    srd(A, 24, 42, 1024)
    A.vmem(f"buffer_load_dword v{vEmb}, v{vEmb}, s[24:27], 0 offen", "emb")
    if TC:
        A("s_getpc_b64 s[74:75]")
        A("Lpc:")
        A(f"s_sub_u32 s74, s74, Lpc-{KNAME}\ns_subb_u32 s75, s75, 0")
        A(f"s_lshr_b32 s3, s2, 3\ns_lshl_b32 s3, s3, 2\ns_add_u32 s3, s3, s{sW}\ns_lshl_b32 s3, s3, 7")
        A(f"s_load_dword s73, s[74:75], s3")
        A(f"s_add_u32 s3, s3, 64")
        A(f"s_load_dword s73, s[74:75], s3")
    srd(A, 68, 50, 0x10000)
    srd(A, 20, 46, 0x800000)
    r_, cc, gam, hi, c2, u = t0, t0+1, t0+2, t0+3, t0+4, t0+5
    A(f"v_lshrrev_b32 v{r_}, 2, v{vL}\nv_and_b32 v{r_}, 3, v{r_}")
    A(f"v_and_b32 v{cc}, 3, v{vL}")
    A(f"v_lshrrev_b32 v{gam}, 4, v{vL}\nv_and_b32 v{gam}, 1, v{gam}")
    A(f"v_lshrrev_b32 v{hi}, 5, v{vL}")
    A(f"v_lshrrev_b32 v{c2}, 1, v{cc}")
    A(f"v_lshl_add_u32 v{c2}, v{gam}, 1, v{c2}")
    A(f"v_and_b32 v{u}, 2, v{r_}\nv_lshlrev_b32 v{u}, 1, v{u}")
    A(f"v_lshl_add_u32 v{u}, v{hi}, 1, v{u}")
    A(f"v_xor_b32 v{c2}, v{c2}, v{u}")
    A(f"v_and_b32 v{cc}, 1, v{cc}\nv_lshlrev_b32 v{cc}, 3, v{cc}")
    A(f"v_lshl_add_u32 v{cc}, v{c2}, 4, v{cc}")
    A(f"v_lshl_add_u32 v{gam}, v{hi}, 2, v{r_}")
    A(f"v_lshl_add_u32 v{cc}, v{gam}, 7, v{cc}")
    A(f"v_xor_b32 v{c2}, 64, v{cc}")
    A(f"v_add_u32 v{vX[0]}, s{sPr}, v{cc}\nv_add_u32 v{vX[1]}, s{sPr}, v{c2}")
    A(f"v_add_u32 v{vA[0]}, s{sWr}, v{cc}\nv_add_u32 v{vA[1]}, s{sWr}, v{c2}")
    A(f"v_lshlrev_b32 v{vEx}, 4, v{vL}")
    A(f"v_add_u32 v{vH}, s{sPr}, v{vEx}")
    A(f"s_lshl_b32 s3, s{sWi}, 13")
    A(f"v_add_u32 v{vHw}, s3, v{vH}")
    A(f"s_mul_i32 s4, s{sW}, {RING}\ns_add_u32 s4, s4, 8192")
    A(f"v_add_u32 v{vLin}, s4, v{vEx}")
    A(f"v_and_b32 v{r_}, 31, v{vL}")
    A(f"v_lshrrev_b32 v{cc}, 3, v{r_}\nv_bfe_u32 v{c2}, v{r_}, 1, 1\nv_lshl_add_u32 v{cc}, v{cc}, 1, v{c2}")
    A(f"v_bfe_u32 v{c2}, v{r_}, 2, 1")
    A(f"v_cmp_eq_u32 vcc, v{c2}, v{hi}")
    A(f"v_and_b32 v{c2}, 1, v{r_}\nv_lshlrev_b32 v{tmp+7}, 4, v{c2}")
    A(f"v_cndmask_b32 v{vKey}, 63, v{cc}, vcc")
    A(f"v_and_b32 v{cc}, 7, v{r_}\nv_lshlrev_b32 v{cc}, 4, v{cc}")
    A(f"v_lshl_add_u32 v{cc}, v{hi}, 3, v{cc}")
    A(f"v_lshl_add_u32 v{cc}, v{r_}, 7, v{cc}")
    A(f"v_add_u32 v{vSt}, s4, v{cc}")
    A(f"v_lshrrev_b32 v{cc}, 3, v{vL}\nv_and_b32 v{c2}, 7, v{vL}\nv_xor_b32 v{c2}, v{c2}, v{cc}\nv_lshlrev_b32 v{c2}, 4, v{c2}")
    A(f"v_lshl_add_u32 v{vOo}, v{cc}, 13, v{c2}")
    A(f"v_lshl_add_u32 v{vBr}, v{hi}, 4, s4")
    A(f"v_lshl_add_u32 v{vBw}, v{vL}, 3, s4")
    A(f"s_add_u32 s60, s50, {EXOFF}\ns_addc_u32 s61, s51, 0\ns_mov_b32 s62, 0x800000\ns_mov_b32 s63, 0x20000")
    A(f"s_lshl_b32 s64, s2, 15\ns_lshl_b32 s4, s{sW}, 13\ns_add_u32 s64, s64, s4")
    A("s_waitcnt lgkmcnt(0)")
    consts(A, sSig, sB, tmp, sK1, sK, sSkip, vNoise)
    A(f"s_getreg_b32 s3, hwreg(HW_REG_XCC_ID)\ns_and_b32 s3, s3, 15")
    A(f"s_add_u32 s66, s66, 64\ns_and_b32 s66, s66, 0xffffffc0\ns_or_b32 s66, s66, s3\nv_mov_b32 v{vFl}, s66")
    def cflag(b):
        A.wait(vm=("hst", b))
        A("s_mov_b64 exec, 1")
        A.vmem(f"buffer_store_dword v{vFl}, off, s[68:71], s65", "flag")
        A("s_mov_b64 exec, -1")
        stamp(A, f"flag{b}")
    hp = tmp
    A(f"s_lshr_b32 s3, s{sSkip}, 16")
    A(f"v_lshlrev_b32 v{tmp+7}, v{tmp+7}, s3")
    for j in range(8):
        A(f"v_cmp_eq_u32 vcc, {j}, v{vKey}\ns_nop 1\nv_cndmask_b32 v{tmp+8+j}, 0, v{tmp+7}, vcc")
    A.wait(vm="emb")
    for x in [f"v_lshlrev_b32 v{hp}, 16, v{vEmb}", f"v_and_b32 v{hp+1}, 0xffff0000, v{vEmb}",
        f"v_mul_f32 v{hp}, v{hp}, v{vNoise}", f"v_mul_f32 v{hp+1}, v{hp+1}, v{vNoise}",
        f"v_cvt_pk_bf16_f32 v{hp+2}, v{hp}, v{hp+1}", f"v_lshlrev_b32 v{hp}, 16, v{hp+2}",
        f"v_and_b32 v{hp+1}, 0xffff0000, v{hp+2}", f"v_mul_f32 v{hp}, 0xbfb8aa3b, v{hp}", f"v_mul_f32 v{hp+1}, 0xbfb8aa3b, v{hp+1}"]: A(x)
    A.lds(f"ds_write_b64 v{vBw}, v[{hp}:{hp+1}] offset:{7*4096}", "bw")
    for tau in range(2):
        for q in range(4):
            b = bias + tau*16 + q*4
            A.lds(f"ds_read_b128 v[{b}:{b+3}], v{vBr} offset:{7*4096 + (32*tau + 8*q) * 4}", "br")

    ms = [(s, (0, 1)) for s in range(64 - 2*EPI)] + [(s, (0,)) for s in range(64 - 2*EPI, 64)] + [(s, (1,)) for s in range(64 - 2*EPI, 64)]
    def reads(i):
        s, taus = ms[i]
        fb = (i % 3) * 16; o = ((s // 2) % NS) * 4096 + (s & 1) * 2048
        w = [f"ds_read_b64_tr_b16 a[{fb+4*tau+2*rho}:{fb+4*tau+2*rho+1}], v{vA[tau]} offset:{o + rho*1024}" for tau in taus for rho in range(2)]
        if s < 32:
            p = [f"ds_read_b64_tr_b16 a[{fb+8+4*t+2*rho}:{fb+8+4*t+2*rho+1}], v{vX[t]} offset:{o + rho*1024}" for t in range(2) for rho in range(2)]
        else:
            p = [f"ds_read_b128 a[{fb+8+4*t}:{fb+8+4*t+3}], v{vH} offset:{o + t*1024}" for t in range(2)]
        h = len(p) // 2
        return p[:h] + w[:2] + p[h:] + w[2:]
    def mfmas(i):
        s, taus = ms[i]
        fb = (i % 3) * 16
        out = []
        for tau in taus:
            for t in range(2):
                w = f"a[{fb+4*tau}:{fb+4*tau+3}]"; p = f"a[{fb+8+4*t}:{fb+8+4*t+3}]"
                if s < 32:
                    d = acc1 + 16*(2*tau+t)
                    c = "0" if s == 0 else f"v[{d}:{d+15}]"
                    out.append(f"v_mfma_f32_32x32x16_bf16 v[{d}:{d+15}], {w}, {p}, {c}")
                else:
                    d = acc2 + 16*(2*tau+t)
                    out.append(f"v_mfma_f32_32x32x16_bf16 v[{d}:{d+15}], {p}, {w}, v[{d}:{d+15}]")
        return out
    of = {0: "", 1: " nt", 2: " sc1", 3: " sc0 sc1", 4: " sc1 nt"}[ONT]
    def epi_ops(tau):
        ops = []
        for t in range(2):
            for q in range(4):
                b = bias + ((tau*2+t)*4+q)*2
                d = acc2 + 16*(2*tau+t) + 4*q
                ops.append(lambda b=b, d=d: A(f"v_cvt_pk_bf16_f32 v{b}, v{d}, v{d+1}"))
                ops.append(lambda b=b, d=d: A(f"v_cvt_pk_bf16_f32 v{b+1}, v{d+2}, v{d+3}"))
                ops.append(lambda b=b, t=t, q=q: A.lds(f"ds_write_b64 v{tmp+4*t+q}, v[{b}:{b+1}] offset:{tau*4096}", "ow"))
        for i in range(4*tau, 4*tau+4):
            ops.append(lambda i=i: A.lds(f"ds_read_b128 v[{acc1+4*i}:{acc1+4*i+3}], v{vLin} offset:{i*1024}", ("o", i)))
        def st(i):
            A.wait(lg=[("o", i)])
            A.vmem(f"buffer_store_dwordx4 v[{acc1+4*i}:{acc1+4*i+3}], v{vOo}, s[20:23], s{sOut} offen{of}", "st")
            if i < 7: A(f"s_add_u32 s{sOut}, s{sOut}, {8*8192}")
        for i in range(4*tau, 4*tau+4):
            ops.append(lambda i=i: st(i))
        return ops
    seen = set()
    def step(i, extra=()):
        s, taus = ms[i]
        A.wait(lg=[("f", i)])
        m = mfmas(i)
        A(m[0])
        rd = []
        if i < 8:
            fb = (i % 3) * 16; tau = (i >> 1) & 1; f = i & 1
            A(f"s_cmp_lg_u32 s{sWi}, {i >> 2}")
            A(f"s_cbranch_scc1 Lres{i}")
            for t in range(2):
                d = acc2 + 16*(2*tau+t)
                c = "0" if f == 0 else f"v[{d}:{d+15}]"
                A(f"v_mfma_f32_32x32x16_bf16 v[{d}:{d+15}], a[{fb+8+4*t}:{fb+8+4*t+3}], v[{tmp+8+4*f}:{tmp+11+4*f}], {c}")
            A(f"Lres{i}:")
        if i + 2 < len(ms) and (ms[i+2][0] < 32) == (s < 32):
            sg = ms[i+2][0] // 2
            if sg not in seen and not 16 <= sg < 20:
                bar(A, f"B{sg}")
            seen.add(sg)
            rd = reads(i + 2)
        fill = []
        if i == 40:
            fill = [lambda t=t, q=q: A(f"v_xor_b32 v{tmp+4*t+q}, {(4*t+q) << 4}, v{vSt}") for t in range(2) for q in range(4)]
        if i == F0: fill.append(lambda: cflag(0))
        if i == F1:
            fill.append(lambda: A(f"v_add_u32 v{vFl}, 0x50, v{vFl}")); fill.append(lambda: cflag(1))
        fill += list(extra)
        n = len(m)
        for g in range(n):
            for x in rd[(len(rd)*g)//n:(len(rd)*(g+1))//n]: A.lds(x, ("f", i + 2))
            for f in fill[(len(fill)*g)//n:(len(fill)*(g+1))//n]: f()
            if g < n - 1: A(m[g+1])
    assert F0 <= 8 or 32 <= F0 < F1 <= 37
    F0s, F0 = F0, (F0 if F0 >= 32 else -1)
    bar(A, "B0"); seen.add(0)
    for i in (0, 1):
        for x in reads(i): A.lds(x, ("f", i))
    for i in range(32): step(i)
    stamp(A, "g1")
    A("s_nop 9")
    n = 0
    for tau in range(2):
        for half in range(2):
            for t in range(2):
                a0 = acc1 + (2*tau+t)*16 + half*8; b0 = bias + tau*16 + half*8; e0 = tmp + (n & 1) * 8; h = tmp + 16 + (n & 1) * 4
                A.raw(".p2align 3")
                for p in range(4):
                    A(f"v_pk_fma_f32 v[{a0+2*p}:{a0+2*p+1}], v[{a0+2*p}:{a0+2*p+1}], s[{sK1}:{sK1+1}], v[{b0+2*p}:{b0+2*p+1}]")
                for p in range(8):
                    A(f"v_exp_f32 v{e0+p}, v{a0+p}")
                if n == F0s: cflag(0); A.raw(".p2align 3")
                for p in range(4):
                    A(f"v_pk_fma_f32 v[{e0+2*p}:{e0+2*p+1}], v[{e0+2*p}:{e0+2*p+1}], s[{sK}:{sK+1}], s[{sK}:{sK+1}]")
                for p in range(8):
                    A(f"v_rcp_f32 v{e0+p}, v{e0+p}")
                for p in range(4):
                    A(f"v_pk_mul_f32 v[{a0+2*p}:{a0+2*p+1}], v[{a0+2*p}:{a0+2*p+1}], v[{e0+2*p}:{e0+2*p+1}]")
                for p in range(4):
                    A(f"v_cvt_pk_bf16_f32 v{h+p}, v{a0+2*p}, v{a0+2*p+1}")
                A.vmem(f"buffer_store_dwordx4 v[{h}:{h+3}], v{vEx}, s[60:63], s64 offen offset:{(n % 4)*1024}", ("hst", n // 4))
                A.lds(f"ds_write_b128 v{vHw}, v[{h}:{h+3}] offset:{6*4096 + n*1024}", "hw")
                if n == 3: A("s_add_u32 s64, s64, 4096")
                n += 1
    if F0s == 8: cflag(0)
    A.wait(lg="all")
    bar(A, "Bh")
    for i in (32, 33):
        for x in reads(i): A.lds(x, ("f", i))
    nb = len(ms) - 2*EPI
    ops0 = epi_ops(0) if EPI else []
    for i in range(32, len(ms)):
        extra = []
        if EPI and i > nb:
            k = i - nb - 1; m_ = 2*EPI - 1
            extra = ops0[(len(ops0)*k)//m_:(len(ops0)*(k+1))//m_]
        if i == nb: stamp(A, "g2a")
        step(i, extra)
    stamp(A, "g2")
    A("s_nop 9")
    for tau in ((1,) if EPI else (0, 1)):
        ops = epi_ops(tau)
        for f in ops[:28]: f()
        if tau == 1: stamp(A, "e1")
        for f in ops[28:]: f()
    stamp(A, "e3")
    barsC = list(A.bars)
    assert barsC == barsP == barsW, (barsC, barsP, barsW)
    dump(A)
    A("Lend:")
    A("s_endpgm")
    A.L += coldtext
    A.raw(".fill 2048, 4, 0xbf800000")
    return wrap(A.text(), 256, 512, 163840, 256, 208)

if __name__ == "__main__":
    kw = dict(a.split("=") for a in sys.argv[2:])
    kw = {k: int(v) for k, v in kw.items()}
    open(sys.argv[1], "w").write(gen(**kw))
```

```python
import sys
from asmlib import *
from gen_a import consts
NSTAMP = 10
NWAVES = 8
NAMES = []
SETS = [
    {"g1", "Bh", "pB20", "B20", "g2", "te", "flag0", "flag1", "got0", "got1", "B26"},
    {"pB0", "B0", "g1", "pBh", "Bh", "flag0", "got0"},
    {"ka", "iss0", "pB0", "B0", "B1", "B2", "B4", "B8"},
    {"g2a", "g2", "e1", "e2", "e3", "B31", "B28"},
    {"pB21", "B21", "pB22", "B22", "pB23", "B23", "pB24", "B24"},
    {"pB11", "B11", "pB12", "B12", "pB14", "B14", "pB15", "B15"},
]

def gen(ONT=0, TC=1, STAMP=0, SSET=0, LOOK=3, LOOK0=4, T1=4, T2=4, TE=4, SP=0, FORCESLOW=0, PRIO=0, EPI=4,
        F0=6, F1=35, WPRE=0, WMAX=23, P0=3, PJ=22, TPO=0, TPE=0):
    NAMES.clear()
    NS = 10
    RING = NS * 4096
    EXOFF = 0x100000 * 4
    A = Asm()
    sW, sB, sR, sTile = 28, 29, 30, 31
    def stamp(A, name="end"):
        if STAMP and (name in SETS[SSET] or name in ("start", "end")):
            s = 76 + 2 * len(A.stamps); A.stamps.append(s); A.names.append(name)
            A(f"s_memtime s[{s}:{s+1}]" if STAMP == 1 else f"s_memrealtime s[{s}:{s+1}]")
    def dump(A):
        if not STAMP: return
        A("s_waitcnt vmcnt(0)")
        stamp(A)
        A("s_memrealtime s[98:99]")
        A("s_waitcnt lgkmcnt(0)")
        A("s_mov_b32 s64, s50\ns_mov_b32 s65, s51\ns_mov_b32 s66, 0x10000000\ns_mov_b32 s67, 0x20000")
        st = A.stamps
        NAMES.append(list(A.names))
        assert len(st) <= 10, len(st)
        for i in range(14):
            A(f"v_mov_b32 v{32+i}, s{st[min(i, len(st)-1)]}")
        A("v_mov_b32 v46, s96\nv_mov_b32 v47, s98")
        A(f"s_lshl_b32 s3, s2, 3\ns_add_u32 s3, s3, s{sW}\ns_lshl_b32 s3, s3, 6\ns_add_u32 s3, s3, 0x100000")
        A("s_mov_b64 exec, 1")
        for i in range(4):
            A(f"buffer_store_dwordx4 v[{32+4*i}:{35+4*i}], off, s[64:67], s3 offset:{16*i}")
    def srd(A, d, p, n):
        A(f"s_mov_b32 s{d}, s{p}\ns_mov_b32 s{d+1}, s{p+1}\ns_mov_b32 s{d+2}, {n}\ns_mov_b32 s{d+3}, 0x20000")
    def bar(A, name):
        stamp(A, "p" + name); A("s_barrier"); stamp(A, name); A.bars.append(name)
    def seg2(j):
        if j < 20: return 0, j - 16
        b, i = (j - 20) // 6, (j - 20) % 6
        if b == 0: return i // 2 + 1, (i % 2) * 2
        return i % 3 + 1, 1 + (i // 3) * 2
    A.stamps = []; A.names = []; A.bars = []
    stamp(A, "start")
    if STAMP: A("s_memrealtime s[96:97]")
    vL = 1
    A("s_load_dwordx16 s[36:51], s[0:1], 0")
    A("s_cmp_ge_u32 s2, 256")
    A("s_cbranch_scc1 Lend")
    A(f"v_lshrrev_b32 v2, 6, v0")
    A(f"v_and_b32 v{vL}, 63, v0")
    A(f"v_readfirstlane_b32 s{sW}, v2")
    A(f"s_bfe_u32 s{sR}, s2, 0x20003\ns_lshr_b32 s5, s2, 5\ns_and_b32 s3, s2, 7")
    A("s_lshl_b32 s6, s5, 3\ns_add_u32 s3, s3, s6")
    A(f"s_lshr_b32 s{sB}, s3, 5\ns_and_b32 s3, s3, 31\ns_lshl_b32 s3, s3, 8")
    A(f"s_lshl_b32 s6, s{sB}, 22\ns_add_u32 s{sTile}, s3, s6")
    A(f"s_cmp_lt_u32 s{sW}, 4")
    A("s_cbranch_scc1 Lcons")
    vO = [4, 5, 6, 7]; vT, vLin, vFo, vBase, vNew, vD, vBv = 8, 9, 16, 17, 18, 19, 20
    sRing, sSo, sStep, sMask, sBase, sSh, sH = 32, 33, 34, 35, 52, 53, 54
    sXcc, sCnt, sSlow, sWhich = 24, 25, 26, 27
    A(f"s_and_b32 s{sH}, s{sW}, 1")
    A(f"s_lshl_b32 s4, s{sR}, 8")
    A(f"s_cmp_lt_u32 s{sW}, 6")
    A(f"s_cselect_b32 s{sSh}, 13, 10")
    A(f"s_cselect_b32 s{sBase}, s{sTile}, s4")
    A(f"s_lshl_b32 s3, s{sH}, 7\ns_add_u32 s{sBase}, s{sBase}, s3")
    A(f"s_sub_u32 s3, s{sW}, 4\ns_mul_i32 s{sRing}, s3, {RING}")
    A(f"s_lshl_b32 s{sStep}, 32, s{sSh}")
    A(f"s_lshl_b32 s{sMask}, 0x200, s{sSh}\ns_sub_u32 s{sMask}, s{sMask}, 1")
    A(f"s_lshl_b32 s{sSo}, s{sR}, 7\ns_lshl_b32 s{sSo}, s{sSo}, s{sSh}")
    A(f"v_lshrrev_b32 v2, 3, v{vL}")
    A(f"v_and_b32 v3, 2, v2\nv_lshlrev_b32 v3, 1, v3")
    A(f"v_and_b32 v11, 4, v2\nv_lshrrev_b32 v11, 1, v11")
    A(f"v_and_b32 v12, 7, v{vL}")
    A(f"v_xor_b32 v3, v3, v11\nv_xor_b32 v3, v3, v12")
    A(f"v_lshlrev_b32 v2, s{sSh}, v2")
    A(f"v_lshl_add_u32 v3, v3, 4, v2")
    A(f"v_add_u32 v{vO[0]}, s{sBase}, v3")
    A(f"s_lshl_b32 s3, 8, s{sSh}\ns_sub_u32 s3, s3, 1024")
    for j in range(1, 4):
        A(f"v_add_u32 v{vO[j]}, s3, v{vO[j-1]}")
    A(f"s_mov_b32 m0, s{sRing}")
    A(f"s_cmp_lt_u32 s{sW}, 6")
    A("s_mov_b32 s14, 0x80000\ns_cselect_b32 s10, 0x800000, s14")
    A("s_mov_b32 s11, 0x20000")
    A("s_waitcnt lgkmcnt(0)")
    A("s_cselect_b32 s8, s36, s40\ns_cselect_b32 s9, s37, s41")
    stamp(A, "ka")
    def seg(A, j):
        if j: A(f"s_add_u32 m0, s{sRing}, {(j % NS) * 4096}")
        if 0 < j < 16: A(f"s_add_u32 s{sSo}, s{sSo}, s{sStep}\ns_and_b32 s{sSo}, s{sSo}, s{sMask}")
        if j >= 16:
            k, sg = seg2(j)
            A(f"s_add_u32 s{sSo}, s{sStep}, {(128*k + 32*sg) * 1024}\ns_and_b32 s{sSo}, s{sSo}, 0x7ffff")
        srdn = 8 if j < 16 else 16
        for i in range(4):
            A.vmem(f"buffer_load_dwordx4 v{vO[i]}, s[{srdn}:{srdn+3}], s{sSo} offen offset:{i*1024} lds", ("s", j))
    def setup_touch(A):
        A(f"v_and_b32 v{vT}, 31, v{vL}\nv_lshlrev_b32 v{vT}, 7, v{vT}")
        A(f"s_lshr_b32 s7, s2, 3\ns_lshl_b32 s7, s7, 2\ns_add_u32 s7, s7, s{sW}\ns_sub_u32 s7, s7, 4\ns_lshl_b32 s7, s7, 12")
        A("s_mov_b32 s12, s40\ns_mov_b32 s13, s41\ns_mov_b32 s15, 0x20000")
        srd(A, 16, 44, 0x80000)
    def setup_flags(A):
        srd(A, 64, 50, 0x10000)
        A(f"v_lshrrev_b32 v2, 2, v{vL}\nv_add_u32 v2, s{sR}, v2\nv_and_b32 v2, 3, v2\nv_lshlrev_b32 v2, 11, v2")
        A(f"v_and_b32 v3, 3, v{vL}\nv_cmp_eq_u32 vcc, 3, v3\nv_lshlrev_b32 v3, 2, v3")
        A(f"s_andn2_b32 s3, s2, 24\ns_lshl_b32 s3, s3, 8\ns_lshl_b32 s4, s{sH}, 4\ns_add_u32 s3, s3, s4")
        A(f"v_mov_b32 v11, 128\nv_cndmask_b32 v3, v3, v11, vcc")
        A(f"v_add3_u32 v{vFo}, v2, v3, s3")
        A("s_mov_b64 exec, 0xffff")
        A.vmem(f"buffer_load_dword v{vBase}, v{vFo}, s[64:67], 0 offen sc1", "base")
        A("s_mov_b64 exec, -1")
        A(f"s_add_u32 s40, s50, {EXOFF}\ns_addc_u32 s41, s51, 0\ns_mov_b32 s42, 0x800000\ns_mov_b32 s43, 0x20000")
        A(f"s_lshl_b32 s6, s2, 15\ns_lshl_b32 s3, s{sH}, 14\ns_add_u32 s6, s6, s3")
        if SP:
            A(f"s_lshr_b32 s3, s{sW}, 1\ns_and_b32 s3, s3, 1\ns_lshl_b32 s3, s3, 11\ns_add_u32 s3, s3, s6\ns_add_u32 s3, s3, 12288")
            A("s_add_u32 s36, s40, s3\ns_addc_u32 s37, s41, 0")
    spn = [0]
    def sp(A, n):
        for _ in range(n):
            if spn[0] < 16:
                A(f"s_load_dword s38, s[36:37], {spn[0]*128}\ns_load_dword s39, s[36:37], {spn[0]*128+64}"); spn[0] += 1
    def extras(A, j):
        if j == T1: A.vmem(f"buffer_load_dword v13, v{vT}, s[12:15], s7 offen", "touch")
        if j == T2: A.vmem(f"buffer_load_dword v13, v{vT}, s[16:19], s7 offen", "touch")
    if T1 == 0 or T2 == 0: setup_touch(A)
    for j in range(LOOK0):
        extras(A, j); seg(A, j)
        if j == 0 and not (T1 == 0 or T2 == 0): setup_touch(A)
        if j == 1: setup_flags(A)
    extras(A, LOOK0)
    stamp(A, "iss0")
    nxt = LOOK0
    j = 0
    while nxt < 16:
        A.wait(vm=("s", j)); bar(A, f"B{j}")
        if j + LOOK >= nxt:
            seg(A, nxt); nxt += 1; extras(A, nxt)
        if SP and j >= 4: sp(A, 1)
        j += 1
    jsplit = j
    A(f"s_cmp_ge_u32 s{sW}, 6")
    A("s_cbranch_scc1 Lwload")
    split = (list(A.vm), list(A.stamps), list(A.names), list(A.bars)); spsplit = spn[0]
    A(f"s_getreg_b32 s{sXcc}, hwreg(HW_REG_XCC_ID)")
    A(f"v_lshlrev_b32 v{vLin}, 4, v{vL}")
    A(f"s_and_b32 s{sXcc}, s{sXcc}, 15")
    A(f"v_add_u32 v{vD}, 64, v{vBase}\nv_and_b32 v{vD}, 0xffffffc0, v{vD}\nv_or_b32 v{vD}, s{sXcc}, v{vD}")
    A(f"v_mov_b32 v{vBv}, v{vBase}")
    A(f"s_mov_b32 s{sSlow}, 0")
    A(f"s_or_b32 s55, s{sXcc}, 16")
    for k in range(1, 4):
        A(f"s_add_u32 s3, s6, {k << 18}\ns_and_b32 s3, s3, 0xc0000\ns_andn2_b32 s4, s6, 0xc0000\ns_or_b32 s{46+k}, s3, s4")
    for j in range(jsplit, 16):
        A.wait(vm=("s", j)); bar(A, f"B{j}")
        if SP: sp(A, 1)
    if SP: sp(A, 16)
    A("s_mov_b64 exec, 0x3330")
    A(f"s_mov_b32 s{sCnt}, 0")
    bar(A, "Bh")
    def poll(A): A.vmem(f"buffer_load_dword v{vNew}, v{vFo}, s[64:67], 0 offen sc1", "poll")
    def check(A, b):
        A(f"v_cmp_ne_u32 vcc, v{vNew}, v{vBase}")
        A(f"v_and_b32 v21, {15 + 16*b}, v{vNew}")
        A(f"v_cmp_eq_u32 s[44:45], s{55 if b else sXcc}, v21")
        A("s_and_b32 s44, s44, vcc_lo")
        A("s_cmp_eq_u32 s44, 0x3330")
    A("Lsp:")
    poll(A)
    A(f"s_add_u32 s{sCnt}, s{sCnt}, 1")
    A(f"s_cmp_gt_u32 s{sCnt}, {0 if FORCESLOW else 12}")
    A("s_cbranch_scc1 Lretry0")
    A.wait(vm="all")
    check(A, 0)
    A("s_cbranch_scc0 Lsp")
    A("Lgot0:")
    A("s_mov_b64 exec, -1")
    stamp(A, "got0")
    def pay(A, j):
        k, sg = seg2(j)
        A(f"s_add_u32 m0, s{sRing}, {(j % NS) * 4096}")
        A(f"s_add_u32 s6, s{46+k}, {sg*4096}")
        for i in range(4):
            A.vmem(f"buffer_load_dwordx4 v{vLin}, s[40:43], s6 offen offset:{i*1024} sc1 lds", ("s", j))
    nxt = 20
    for _ in range(P0): pay(A, nxt); nxt += 1
    for j in range(20, 32):
        A.wait(vm=("s", j)); bar(A, f"B{j}")
        if j == 20:
            A("s_mov_b64 exec, 4")
            A.vmem(f"buffer_store_dword v{vD}, v{vFo}, s[64:67], 0 offen", "flag")
            A("s_mov_b64 exec, -1")
        if j == PJ:
            A("s_mov_b64 exec, 0x3330"); poll(A); A("s_mov_b64 exec, -1")
        if j == PJ + 1:
            while nxt < 26: pay(A, nxt); nxt += 1
            A.wait(vm="poll")
            A("s_mov_b64 exec, 0x3330")
            check(A, 1)
            A("s_branch Lretry1" if FORCESLOW else "s_cbranch_scc0 Lretry1")
            A("Lgot1:")
            A("s_mov_b64 exec, -1")
            stamp(A, "got1")
        n = 0
        while nxt < (26 if j <= PJ else 32) and nxt - NS <= j - 2 and n < (1 if j <= PJ else 2):
            pay(A, nxt); nxt += 1; n += 1
    assert nxt == 32
    barsP = list(A.bars)
    if SP: A("s_waitcnt lgkmcnt(0)")
    dump(A)
    A("s_endpgm")
    cold0 = len(A.L)
    A("Lretry0:")
    A(f"s_mov_b32 s{sWhich}, 0xffff")
    A("s_branch Lretry")
    A("Lretry1:")
    A(f"s_mov_b32 s{sWhich}, 0")
    A("Lretry:")
    A(f"s_mov_b32 s{sCnt}, 0")
    A("Lr_loop:")
    A("s_mov_b64 exec, 0xffff")
    A(f"buffer_load_dword v{vNew}, v{vFo}, s[64:67], 0 offen sc1")
    A(f"s_add_u32 s{sCnt}, s{sCnt}, 1")
    A("s_waitcnt vmcnt(0)")
    A(f"v_cmp_ne_u32 s[56:57], v{vNew}, v{vBase}")
    A(f"v_and_b32 v21, 15, v{vNew}")
    A(f"v_cmp_eq_u32 s[58:59], s{sXcc}, v21")
    A(f"v_and_b32 v21, 16, v{vNew}")
    A(f"v_cmp_ne_u32 s[60:61], 0, v21")
    if FORCESLOW: A("s_mov_b32 s58, 0")
    A("s_and_b32 s44, s56, s58")
    A(f"s_or_b32 s45, s60, s{sWhich}\ns_and_b32 s45, s45, s44\ns_lshr_b32 s3, s45, 1\ns_and_b32 s45, s45, s3")
    A("s_lshr_b32 s3, s44, 2\ns_or_b32 s45, s45, s3")
    A("s_lshr_b32 s3, s56, 3\ns_or_b32 s45, s45, s3\ns_and_b32 s45, s45, 0x1110")
    A("s_andn2_b32 s3, s56, s58\ns_and_b32 s3, s3, 0x7770\ns_and_b32 s4, s56, 0x8880\ns_or_b32 s3, s3, s4")
    A(f"s_lshr_b32 s4, s{sCnt}, 4\ns_or_b32 s3, s3, s4")
    A("s_cbranch_scc0 Lr_chk")
    A(f"s_cmp_lg_u32 s{sSlow}, 0")
    A("s_cbranch_scc1 Lr_chk")
    A("s_and_b32 s3, s56, s60\ns_and_b32 s3, s3, 3\ns_cmp_lg_u32 s3, 3")
    A("s_cbranch_scc1 Lr_again")
    A(f"s_mov_b32 s{sSlow}, 1")
    A("buffer_wbl2 sc1")
    A("s_waitcnt vmcnt(0)")
    A(f"v_add_u32 v{vBv}, 1, v{vBv}")
    A("s_mov_b64 exec, 8")
    A(f"buffer_store_dword v{vBv}, v{vFo}, s[64:67], 0 offen sc1")
    A("Lr_chk:")
    A("s_cmp_eq_u32 s45, 0x1110")
    A("s_cbranch_scc1 Lr_done")
    A("Lr_again:")
    A(f"s_cmp_lt_u32 s{sCnt}, 0x100000")
    A("s_cbranch_scc1 Lr_loop")
    A("Lr_done:")
    A(f"s_cmp_eq_u32 s{sSlow}, 0")
    A("s_cbranch_scc1 Lr_out")
    A("buffer_inv sc1")
    A("s_mov_b64 exec, 8")
    A(f"v_add_u32 v{vBv}, 1, v{vBv}")
    A(f"buffer_store_dword v{vBv}, v{vFo}, s[64:67], 0 offen sc1")
    A("s_waitcnt vmcnt(0)")
    A("Lr_out:")
    A(f"s_cmp_eq_u32 s{sWhich}, 0")
    A("s_cbranch_scc1 Lgot1")
    A("s_branch Lgot0")
    coldtext = A.L[cold0:]; del A.L[cold0:]
    A("Lwload:")
    A.vm, A.stamps, A.names, A.bars = [list(x) for x in split]; A.lg = []; spn[0] = spsplit
    A(f"s_lshl_b32 s{sStep}, s{sR}, 17")
    A(f"v_lshrrev_b32 v14, 5, v{vL}\nv_lshl_add_u32 v12, v14, 13, v{vT}")
    def te(A):
        A.vmem(f"buffer_load_dword v13, v12, s[40:43], s6 offen", "te")
        if TE > 2:
            A("s_add_u32 s6, s6, 4096")
            A.vmem(f"buffer_load_dword v13, v{12 if TE == 4 else vT}, s[40:43], s6 offen", "te")
    nxt = 16
    if TE and WPRE == 0: te(A)
    for j in range(jsplit, 16):
        A.wait(vm=("s", j)); bar(A, f"B{j}")
        n = 0
        while nxt < 16 + (WPRE if TE else 4) and n < 2:
            seg(A, nxt); nxt += 1; n += 1
            if nxt == 16 + WPRE and TE: te(A)
        if SP: sp(A, 1)
    if SP: sp(A, 16)
    if TE: A.wait(vm="te"); stamp(A, "te")
    while nxt <= WMAX: seg(A, nxt); nxt += 1
    A.wait(vm=("s", 19)); bar(A, "Bh")
    for j in range(20, 32):
        A.wait(vm=("s", j)); bar(A, f"B{j}")
        if nxt < 32: seg(A, nxt); nxt += 1
    barsW = list(A.bars)
    if SP: A("s_waitcnt lgkmcnt(0)")
    dump(A)
    A("s_endpgm")
    A.raw(".p2align 6")
    A("Lcons:")
    A.vm = []; A.lg = []; A.stamps = A.stamps[:1]; A.names = A.names[:1]; A.bars = []
    acc1, acc2, bias, tmp = 24, 88, 152, 184
    vA = [2, 3]; vX = [4, 5]
    vH, vHw, vKey, vSt, vLin, vBr, vEmb, vNoise, vOo, vBw, vEx, vFl = 6, 7, 8, 9, 10, 11, 12, 13, 14, 15, 22, 23
    t0 = 16
    sWi, sWj, sPr, sWr, sOut = 32, 33, 34, 35, 59
    sK1, sK, sSkip, sSig = 52, 54, 56, 58
    if PRIO: A(f"s_setprio {PRIO}")
    A(f"s_and_b32 s{sWi}, s{sW}, 1\ns_lshr_b32 s{sWj}, s{sW}, 1")
    A(f"s_mul_i32 s{sPr}, s{sWj}, {RING}\ns_mul_i32 s{sWr}, s{sWi}, {RING}\ns_add_u32 s{sWr}, s{sWr}, {2*RING}")
    A(f"s_lshl_b32 s6, s{sR}, 8\ns_lshl_b32 s3, s{sWi}, 7\ns_add_u32 s6, s6, s3")
    A(f"v_and_b32 v{vEmb}, 31, v{vL}\nv_lshl_add_u32 v{vEmb}, v{vEmb}, 2, s6")
    A(f"s_lshl_b32 s6, s6, 12\ns_lshl_b32 s3, s{sWj}, 7\ns_add_u32 s6, s6, s3\ns_add_u32 s{sOut}, s6, s{sTile}")
    A(f"s_lshl_b32 s65, s2, 8\ns_lshl_b32 s3, s{sWj}, 4\ns_add_u32 s65, s65, s3\ns_lshl_b32 s3, s{sWi}, 2\ns_add_u32 s65, s65, s3")
    A("s_waitcnt lgkmcnt(0)")
    A(f"s_load_dword s{sSig}, s[38:39], 0")
    A(f"s_load_dword s66, s[50:51], s65")
    srd(A, 24, 42, 1024)
    A.vmem(f"buffer_load_dword v{vEmb}, v{vEmb}, s[24:27], 0 offen", "emb")
    if TC:
        A("s_getpc_b64 s[74:75]")
        A("Lpc:")
        A(f"s_sub_u32 s74, s74, Lpc-{KNAME}\ns_subb_u32 s75, s75, 0")
        A(f"s_lshr_b32 s3, s2, 3\ns_lshl_b32 s3, s3, 2\ns_add_u32 s3, s3, s{sW}\ns_lshl_b32 s3, s3, 7")
        A(f"s_load_dword s73, s[74:75], s3")
        A(f"s_add_u32 s3, s3, 64")
        A(f"s_load_dword s73, s[74:75], s3")
    srd(A, 68, 50, 0x10000)
    srd(A, 20, 46, 0x800000)
    A(f"s_add_u32 s60, s50, {EXOFF}\ns_addc_u32 s61, s51, 0\ns_mov_b32 s62, 0x800000\ns_mov_b32 s63, 0x20000")
    if TPO:
        A(f"v_lshlrev_b32 v{t0}, {19 - (TPO.bit_length() - 1)}, v{vL}")
        A(f"s_mov_b64 exec, {(1 << TPO) - 1 if TPO < 64 else -1}")
        A.vmem(f"buffer_load_dword v{tmp+20}, v{t0}, s[20:23], s{sOut} offen", "tp")
        A("s_mov_b64 exec, -1")
    if TPE:
        A(f"s_lshl_b32 s3, s2, 15\ns_lshl_b32 s4, s{sW}, 13\ns_add_u32 s3, s3, s4")
        A(f"s_mov_b64 exec, 1")
        A.vmem(f"buffer_load_dword v{tmp+21}, off, s[60:63], s3", "tp")
        A("s_mov_b64 exec, -1")
    r_, cc, gam, hi, c2, u = t0, t0+1, t0+2, t0+3, t0+4, t0+5
    A(f"v_lshrrev_b32 v{r_}, 2, v{vL}\nv_and_b32 v{r_}, 3, v{r_}")
    A(f"v_and_b32 v{cc}, 3, v{vL}")
    A(f"v_lshrrev_b32 v{gam}, 4, v{vL}\nv_and_b32 v{gam}, 1, v{gam}")
    A(f"v_lshrrev_b32 v{hi}, 5, v{vL}")
    A(f"v_lshrrev_b32 v{c2}, 1, v{cc}")
    A(f"v_lshl_add_u32 v{c2}, v{gam}, 1, v{c2}")
    A(f"v_and_b32 v{u}, 2, v{r_}\nv_lshlrev_b32 v{u}, 1, v{u}")
    A(f"v_lshl_add_u32 v{u}, v{hi}, 1, v{u}")
    A(f"v_xor_b32 v{c2}, v{c2}, v{u}")
    A(f"v_and_b32 v{cc}, 1, v{cc}\nv_lshlrev_b32 v{cc}, 3, v{cc}")
    A(f"v_lshl_add_u32 v{cc}, v{c2}, 4, v{cc}")
    A(f"v_lshl_add_u32 v{gam}, v{hi}, 2, v{r_}")
    A(f"v_lshl_add_u32 v{cc}, v{gam}, 7, v{cc}")
    A(f"v_xor_b32 v{c2}, 64, v{cc}")
    A(f"v_add_u32 v{vX[0]}, s{sPr}, v{cc}\nv_add_u32 v{vX[1]}, s{sPr}, v{c2}")
    A(f"v_add_u32 v{vA[0]}, s{sWr}, v{cc}\nv_add_u32 v{vA[1]}, s{sWr}, v{c2}")
    A(f"v_lshlrev_b32 v{vEx}, 4, v{vL}")
    A(f"v_add_u32 v{vH}, s{sPr}, v{vEx}")
    A(f"s_lshl_b32 s3, s{sWi}, 13")
    A(f"v_add_u32 v{vHw}, s3, v{vH}")
    A(f"s_mul_i32 s4, s{sW}, {RING}\ns_add_u32 s4, s4, 8192")
    A(f"v_add_u32 v{vLin}, s4, v{vEx}")
    A(f"v_and_b32 v{r_}, 31, v{vL}")
    A(f"v_lshrrev_b32 v{cc}, 3, v{r_}\nv_bfe_u32 v{c2}, v{r_}, 1, 1\nv_lshl_add_u32 v{cc}, v{cc}, 1, v{c2}")
    A(f"v_bfe_u32 v{c2}, v{r_}, 2, 1")
    A(f"v_cmp_eq_u32 vcc, v{c2}, v{hi}")
    A(f"v_and_b32 v{c2}, 1, v{r_}\nv_lshlrev_b32 v{tmp+7}, 4, v{c2}")
    A(f"v_cndmask_b32 v{vKey}, 63, v{cc}, vcc")
    A(f"v_and_b32 v{cc}, 7, v{r_}\nv_lshlrev_b32 v{cc}, 4, v{cc}")
    A(f"v_lshl_add_u32 v{cc}, v{hi}, 3, v{cc}")
    A(f"v_lshl_add_u32 v{cc}, v{r_}, 7, v{cc}")
    A(f"v_add_u32 v{vSt}, s4, v{cc}")
    A(f"v_lshrrev_b32 v{cc}, 3, v{vL}\nv_and_b32 v{c2}, 7, v{vL}\nv_xor_b32 v{c2}, v{c2}, v{cc}\nv_lshlrev_b32 v{c2}, 4, v{c2}")
    A(f"v_lshl_add_u32 v{vOo}, v{cc}, 13, v{c2}")
    A(f"v_lshl_add_u32 v{vBr}, v{hi}, 4, s4")
    A(f"v_lshl_add_u32 v{vBw}, v{vL}, 3, s4")
    A(f"s_lshl_b32 s64, s2, 15\ns_lshl_b32 s4, s{sW}, 13\ns_add_u32 s64, s64, s4")
    A("s_waitcnt lgkmcnt(0)")
    consts(A, sSig, sB, tmp, sK1, sK, sSkip, vNoise)
    A(f"s_getreg_b32 s3, hwreg(HW_REG_XCC_ID)\ns_and_b32 s3, s3, 15")
    A(f"s_add_u32 s66, s66, 64\ns_and_b32 s66, s66, 0xffffffc0\ns_or_b32 s66, s66, s3\nv_mov_b32 v{vFl}, s66")
    def cflag(b):
        A.wait(vm=("hst", b))
        A("s_mov_b64 exec, 1")
        A.vmem(f"buffer_store_dword v{vFl}, off, s[68:71], s65", "flag")
        A("s_mov_b64 exec, -1")
        stamp(A, f"flag{b}")
    hp = tmp
    A(f"s_lshr_b32 s3, s{sSkip}, 16")
    A(f"v_lshlrev_b32 v{tmp+7}, v{tmp+7}, s3")
    for j in range(8):
        A(f"v_cmp_eq_u32 vcc, {j}, v{vKey}\ns_nop 1\nv_cndmask_b32 v{tmp+8+j}, 0, v{tmp+7}, vcc")
    A.wait(vm="emb")
    for x in [f"v_lshlrev_b32 v{hp}, 16, v{vEmb}", f"v_and_b32 v{hp+1}, 0xffff0000, v{vEmb}",
        f"v_mul_f32 v{hp}, v{hp}, v{vNoise}", f"v_mul_f32 v{hp+1}, v{hp+1}, v{vNoise}",
        f"v_cvt_pk_bf16_f32 v{hp+2}, v{hp}, v{hp+1}", f"v_lshlrev_b32 v{hp}, 16, v{hp+2}",
        f"v_and_b32 v{hp+1}, 0xffff0000, v{hp+2}", f"v_mul_f32 v{hp}, 0xbfb8aa3b, v{hp}", f"v_mul_f32 v{hp+1}, 0xbfb8aa3b, v{hp+1}"]: A(x)
    A.lds(f"ds_write_b64 v{vBw}, v[{hp}:{hp+1}] offset:{7*4096}", "bw")
    for tau in range(2):
        for q in range(4):
            b = bias + tau*16 + q*4
            A.lds(f"ds_read_b128 v[{b}:{b+3}], v{vBr} offset:{7*4096 + (32*tau + 8*q) * 4}", "br")

    ms = [(s, (0, 1)) for s in range(64 - 2*EPI)] + [(s, (0,)) for s in range(64 - 2*EPI, 64)] + [(s, (1,)) for s in range(64 - 2*EPI, 64)]
    def reads(i):
        s, taus = ms[i]
        fb = (i % 3) * 16; o = ((s // 2) % NS) * 4096 + (s & 1) * 2048
        w = [f"ds_read_b64_tr_b16 a[{fb+4*tau+2*rho}:{fb+4*tau+2*rho+1}], v{vA[tau]} offset:{o + rho*1024}" for tau in taus for rho in range(2)]
        if s < 32:
            p = [f"ds_read_b64_tr_b16 a[{fb+8+4*t+2*rho}:{fb+8+4*t+2*rho+1}], v{vX[t]} offset:{o + rho*1024}" for t in range(2) for rho in range(2)]
        else:
            p = [f"ds_read_b128 a[{fb+8+4*t}:{fb+8+4*t+3}], v{vH} offset:{o + t*1024}" for t in range(2)]
        h = len(p) // 2
        return p[:h] + w[:2] + p[h:] + w[2:]
    def mfmas(i):
        s, taus = ms[i]
        fb = (i % 3) * 16
        out = []
        for tau in taus:
            for t in range(2):
                w = f"a[{fb+4*tau}:{fb+4*tau+3}]"; p = f"a[{fb+8+4*t}:{fb+8+4*t+3}]"
                if s < 32:
                    d = acc1 + 16*(2*tau+t)
                    c = "0" if s == 0 else f"v[{d}:{d+15}]"
                    out.append(f"v_mfma_f32_32x32x16_bf16 v[{d}:{d+15}], {w}, {p}, {c}")
                else:
                    d = acc2 + 16*(2*tau+t)
                    out.append(f"v_mfma_f32_32x32x16_bf16 v[{d}:{d+15}], {p}, {w}, v[{d}:{d+15}]")
        return out
    of = {0: "", 1: " nt", 2: " sc1", 3: " sc0 sc1", 4: " sc1 nt"}[ONT]
    def epi_ops(tau):
        ops = []
        for t in range(2):
            for q in range(4):
                b = bias + ((tau*2+t)*4+q)*2
                d = acc2 + 16*(2*tau+t) + 4*q
                ops.append(lambda b=b, d=d: A(f"v_cvt_pk_bf16_f32 v{b}, v{d}, v{d+1}"))
                ops.append(lambda b=b, d=d: A(f"v_cvt_pk_bf16_f32 v{b+1}, v{d+2}, v{d+3}"))
                ops.append(lambda b=b, t=t, q=q: A.lds(f"ds_write_b64 v{tmp+4*t+q}, v[{b}:{b+1}] offset:{tau*4096}", "ow"))
        for i in range(4*tau, 4*tau+4):
            ops.append(lambda i=i: A.lds(f"ds_read_b128 v[{acc1+4*i}:{acc1+4*i+3}], v{vLin} offset:{i*1024}", ("o", i)))
        def st(i):
            A.wait(lg=[("o", i)])
            A.vmem(f"buffer_store_dwordx4 v[{acc1+4*i}:{acc1+4*i+3}], v{vOo}, s[20:23], s{sOut} offen{of}", "st")
            if i < 7: A(f"s_add_u32 s{sOut}, s{sOut}, {8*8192}")
        for i in range(4*tau, 4*tau+4):
            ops.append(lambda i=i: st(i))
        return ops
    seen = set()
    def step(i, extra=()):
        s, taus = ms[i]
        A.wait(lg=[("f", i)])
        m = mfmas(i)
        A(m[0])
        rd = []
        if i < 8:
            fb = (i % 3) * 16; tau = (i >> 1) & 1; f = i & 1
            A(f"s_cmp_lg_u32 s{sWi}, {i >> 2}")
            A(f"s_cbranch_scc1 Lres{i}")
            for t in range(2):
                d = acc2 + 16*(2*tau+t)
                c = "0" if f == 0 else f"v[{d}:{d+15}]"
                A(f"v_mfma_f32_32x32x16_bf16 v[{d}:{d+15}], a[{fb+8+4*t}:{fb+8+4*t+3}], v[{tmp+8+4*f}:{tmp+11+4*f}], {c}")
            A(f"Lres{i}:")
        if i + 2 < len(ms) and (ms[i+2][0] < 32) == (s < 32):
            sg = ms[i+2][0] // 2
            if sg not in seen and not 16 <= sg < 20:
                bar(A, f"B{sg}")
            seen.add(sg)
            rd = reads(i + 2)
        fill = []
        if i == 40:
            fill = [lambda t=t, q=q: A(f"v_xor_b32 v{tmp+4*t+q}, {(4*t+q) << 4}, v{vSt}") for t in range(2) for q in range(4)]
        if i == F0: fill.append(lambda: cflag(0))
        if i == F1:
            fill.append(lambda: A(f"v_add_u32 v{vFl}, 0x50, v{vFl}")); fill.append(lambda: cflag(1))
        fill += list(extra)
        n = len(m)
        for g in range(n):
            for x in rd[(len(rd)*g)//n:(len(rd)*(g+1))//n]: A.lds(x, ("f", i + 2))
            for f in fill[(len(fill)*g)//n:(len(fill)*(g+1))//n]: f()
            if g < n - 1: A(m[g+1])
    assert F0 <= 8 or 32 <= F0 < F1 <= 37
    F0s, F0 = F0, (F0 if F0 >= 32 else -1)
    bar(A, "B0"); seen.add(0)
    for i in (0, 1):
        for x in reads(i): A.lds(x, ("f", i))
    for i in range(32): step(i)
    stamp(A, "g1")
    A.wait(vm="tp")
    A("s_nop 9")
    n = 0
    for tau in range(2):
        for half in range(2):
            for t in range(2):
                a0 = acc1 + (2*tau+t)*16 + half*8; b0 = bias + tau*16 + half*8; e0 = tmp + (n & 1) * 8; h = tmp + 16 + (n & 1) * 4
                A.raw(".p2align 3")
                for p in range(4):
                    A(f"v_pk_fma_f32 v[{a0+2*p}:{a0+2*p+1}], v[{a0+2*p}:{a0+2*p+1}], s[{sK1}:{sK1+1}], v[{b0+2*p}:{b0+2*p+1}]")
                for p in range(8):
                    A(f"v_exp_f32 v{e0+p}, v{a0+p}")
                if n == F0s: cflag(0); A.raw(".p2align 3")
                for p in range(4):
                    A(f"v_pk_fma_f32 v[{e0+2*p}:{e0+2*p+1}], v[{e0+2*p}:{e0+2*p+1}], s[{sK}:{sK+1}], s[{sK}:{sK+1}]")
                for p in range(8):
                    A(f"v_rcp_f32 v{e0+p}, v{e0+p}")
                for p in range(4):
                    A(f"v_pk_mul_f32 v[{a0+2*p}:{a0+2*p+1}], v[{a0+2*p}:{a0+2*p+1}], v[{e0+2*p}:{e0+2*p+1}]")
                for p in range(4):
                    A(f"v_cvt_pk_bf16_f32 v{h+p}, v{a0+2*p}, v{a0+2*p+1}")
                A.vmem(f"buffer_store_dwordx4 v[{h}:{h+3}], v{vEx}, s[60:63], s64 offen offset:{(n % 4)*1024}", ("hst", n // 4))
                A.lds(f"ds_write_b128 v{vHw}, v[{h}:{h+3}] offset:{6*4096 + n*1024}", "hw")
                if n == 3: A("s_add_u32 s64, s64, 4096")
                n += 1
    if F0s == 8: cflag(0)
    A.wait(lg="all")
    bar(A, "Bh")
    for i in (32, 33):
        for x in reads(i): A.lds(x, ("f", i))
    nb = len(ms) - 2*EPI
    ops0 = epi_ops(0) if EPI else []
    for i in range(32, len(ms)):
        extra = []
        if EPI and i > nb:
            k = i - nb - 1; m_ = 2*EPI - 1
            extra = ops0[(len(ops0)*k)//m_:(len(ops0)*(k+1))//m_]
        if i == nb: stamp(A, "g2a")
        step(i, extra)
    stamp(A, "g2")
    A("s_nop 9")
    for tau in ((1,) if EPI else (0, 1)):
        ops = epi_ops(tau)
        for f in ops[:28]: f()
        if tau == 1: stamp(A, "e1")
        for f in ops[28:]: f()
    stamp(A, "e3")
    barsC = list(A.bars)
    assert barsC == barsP == barsW, (barsC, barsP, barsW)
    dump(A)
    A("Lend:")
    A("s_endpgm")
    A.L += coldtext
    A.raw(".fill 2048, 4, 0xbf800000")
    return wrap(A.text(), 256, 512, 163840, 256, 208)

if __name__ == "__main__":
    kw = dict(a.split("=") for a in sys.argv[2:])
    kw = {k: int(v) for k, v in kw.items()}
    open(sys.argv[1], "w").write(gen(**kw))
```

```python
import sys
from asmlib import *
from gen_a import consts
NSTAMP = 10
NWAVES = 8
NAMES = []
SETS = [
    {"g1", "Bh", "pB20", "B20", "g2", "te", "flag0", "flag1", "got0", "got1", "B26"},
    {"pB0", "B0", "g1", "pBh", "Bh", "flag0", "got0"},
    {"ka", "iss0", "pB0", "B0", "B1", "B2", "B4", "B8"},
    {"g2a", "g2", "Bz", "e3", "pB31", "B31", "B28", "pBz"},
    {"pB21", "B21", "pB22", "B22", "pB23", "B23", "pB24", "B24"},
    {"pB11", "B11", "pB12", "B12", "pB14", "B14", "pB15", "B15"},
]

def gen(ONT=0, TC=1, STAMP=0, SSET=0, LOOK=3, LOOK0=4, T1=4, T2=4, TE=4, FORCESLOW=0, PRIO=0, EPI=4,
        F0=6, F1=35, WPRE=0, WMAX=23, P0=3, PJ=22, TPO=1, E0J=28, WBS=0, WBS2=0):
    NAMES.clear()
    NS = 10
    RING = NS * 4096
    A = Asm()
    sW, sB, sR, sTile = 28, 29, 30, 31
    def stamp(A, name="end"):
        if STAMP and (name in SETS[SSET] or name in ("start", "end")):
            s = 76 + 2 * len(A.stamps); A.stamps.append(s); A.names.append(name)
            A(f"s_memtime s[{s}:{s+1}]" if STAMP == 1 else f"s_memrealtime s[{s}:{s+1}]")
    def dump(A):
        if not STAMP: return
        A("s_waitcnt vmcnt(0)")
        stamp(A)
        A("s_memrealtime s[98:99]")
        A("s_waitcnt lgkmcnt(0)")
        A("s_mov_b32 s64, s50\ns_mov_b32 s65, s51\ns_mov_b32 s66, 0x10000000\ns_mov_b32 s67, 0x20000")
        st = A.stamps
        NAMES.append(list(A.names))
        assert len(st) <= 10, len(st)
        for i in range(14):
            A(f"v_mov_b32 v{32+i}, s{st[min(i, len(st)-1)]}")
        A("v_mov_b32 v46, s96\nv_mov_b32 v47, s98")
        A(f"s_lshl_b32 s3, s2, 3\ns_add_u32 s3, s3, s{sW}\ns_lshl_b32 s3, s3, 6\ns_add_u32 s3, s3, 0x100000")
        A("s_mov_b64 exec, 1")
        for i in range(4):
            A(f"buffer_store_dwordx4 v[{32+4*i}:{35+4*i}], off, s[64:67], s3 offset:{16*i}")
    def srd(A, d, p, n):
        A(f"s_mov_b32 s{d}, s{p}\ns_mov_b32 s{d+1}, s{p+1}\ns_mov_b32 s{d+2}, {n}\ns_mov_b32 s{d+3}, 0x20000")
    def bar(A, name):
        stamp(A, "p" + name); A("s_barrier"); stamp(A, name); A.bars.append(name)
    def seg2(j):
        if j < 20: return 0, j - 16
        b, i = (j - 20) // 6, (j - 20) % 6
        if b == 0: return i // 2 + 1, (i % 2) * 2
        return i % 3 + 1, 1 + (i // 3) * 2
    A.stamps = []; A.names = []; A.bars = []
    stamp(A, "start")
    if STAMP: A("s_memrealtime s[96:97]")
    vL = 1
    A("s_load_dwordx16 s[36:51], s[0:1], 0")
    A("s_cmp_ge_u32 s2, 256")
    A("s_cbranch_scc1 Lend")
    A(f"v_lshrrev_b32 v2, 6, v0")
    A(f"v_and_b32 v{vL}, 63, v0")
    A(f"v_readfirstlane_b32 s{sW}, v2")
    A(f"s_bfe_u32 s{sR}, s2, 0x20003\ns_lshr_b32 s5, s2, 5\ns_and_b32 s3, s2, 7")
    A("s_lshl_b32 s6, s5, 3\ns_add_u32 s3, s3, s6")
    A(f"s_lshr_b32 s{sB}, s3, 5\ns_and_b32 s3, s3, 31\ns_lshl_b32 s3, s3, 8")
    A(f"s_lshl_b32 s6, s{sB}, 22\ns_add_u32 s{sTile}, s3, s6")
    A(f"s_cmp_lt_u32 s{sW}, 4")
    A("s_cbranch_scc1 Lcons")
    vO = [4, 5, 6, 7]; vT, vLin, vFo, vBase, vNew, vD, vBv = 8, 9, 16, 17, 18, 19, 20
    sRing, sSo, sStep, sMask, sBase, sSh, sH = 32, 33, 34, 35, 52, 53, 54
    sXcc, sCnt, sSlow, sWhich = 24, 25, 26, 27
    A(f"s_and_b32 s{sH}, s{sW}, 1")
    A(f"s_lshl_b32 s4, s{sR}, 8")
    A(f"s_cmp_lt_u32 s{sW}, 6")
    A(f"s_cselect_b32 s{sSh}, 13, 10")
    A(f"s_cselect_b32 s{sBase}, s{sTile}, s4")
    A(f"s_lshl_b32 s3, s{sH}, 7\ns_add_u32 s{sBase}, s{sBase}, s3")
    A(f"s_sub_u32 s3, s{sW}, 4\ns_mul_i32 s{sRing}, s3, {RING}")
    A(f"s_lshl_b32 s{sStep}, 32, s{sSh}")
    A(f"s_lshl_b32 s{sMask}, 0x200, s{sSh}\ns_sub_u32 s{sMask}, s{sMask}, 1")
    A(f"s_lshl_b32 s{sSo}, s{sR}, 7\ns_lshl_b32 s{sSo}, s{sSo}, s{sSh}")
    A(f"v_lshrrev_b32 v2, 3, v{vL}")
    A(f"v_and_b32 v3, 2, v2\nv_lshlrev_b32 v3, 1, v3")
    A(f"v_and_b32 v11, 4, v2\nv_lshrrev_b32 v11, 1, v11")
    A(f"v_and_b32 v12, 7, v{vL}")
    A(f"v_xor_b32 v3, v3, v11\nv_xor_b32 v3, v3, v12")
    A(f"v_lshlrev_b32 v2, s{sSh}, v2")
    A(f"v_lshl_add_u32 v3, v3, 4, v2")
    A(f"v_add_u32 v{vO[0]}, s{sBase}, v3")
    A(f"s_lshl_b32 s3, 8, s{sSh}\ns_sub_u32 s3, s3, 1024")
    for j in range(1, 4):
        A(f"v_add_u32 v{vO[j]}, s3, v{vO[j-1]}")
    A(f"s_mov_b32 m0, s{sRing}")
    A(f"s_cmp_lt_u32 s{sW}, 6")
    A("s_mov_b32 s14, 0x80000\ns_cselect_b32 s10, 0x800000, s14")
    A("s_mov_b32 s11, 0x20000")
    A("s_waitcnt lgkmcnt(0)")
    A("s_cselect_b32 s8, s36, s40\ns_cselect_b32 s9, s37, s41")
    stamp(A, "ka")
    def seg(A, j, pitch=1024):
        if j: A(f"s_add_u32 m0, s{sRing}, {(j % NS) * 4096}")
        if 0 < j < 16: A(f"s_add_u32 s{sSo}, s{sSo}, s{sStep}\ns_and_b32 s{sSo}, s{sSo}, s{sMask}")
        if j >= 16:
            k, sg = seg2(j)
            A(f"s_add_u32 s{sSo}, s{sStep}, {(128*k + 32*sg) * pitch}\ns_and_b32 s{sSo}, s{sSo}, s{sMask}")
        srdn = 8 if j < 16 else (16 if pitch == 1024 else 40)
        for i in range(4):
            A.vmem(f"buffer_load_dwordx4 v{vO[i]}, s[{srdn}:{srdn+3}], s{sSo} offen offset:{i*1024}{' sc1' if srdn == 40 else ''} lds", ("s", j))
    def setup_touch(A):
        A(f"v_and_b32 v{vT}, 31, v{vL}\nv_lshlrev_b32 v{vT}, 7, v{vT}")
        A(f"s_lshr_b32 s7, s2, 3\ns_lshl_b32 s7, s7, 2\ns_add_u32 s7, s7, s{sW}\ns_sub_u32 s7, s7, 4\ns_lshl_b32 s7, s7, 12")
        A("s_mov_b32 s12, s40\ns_mov_b32 s13, s41\ns_mov_b32 s15, 0x20000")
        srd(A, 16, 44, 0x80000)
    def setup_flags(A):
        srd(A, 64, 50, 0x10000)
        A(f"v_lshrrev_b32 v2, 2, v{vL}\nv_add_u32 v2, s{sR}, v2\nv_and_b32 v2, 3, v2\nv_lshlrev_b32 v2, 11, v2")
        A(f"v_and_b32 v3, 3, v{vL}\nv_cmp_eq_u32 vcc, 3, v3\nv_lshlrev_b32 v3, 2, v3")
        A(f"s_andn2_b32 s3, s2, 24\ns_lshl_b32 s3, s3, 8\ns_lshl_b32 s4, s{sH}, 4\ns_add_u32 s3, s3, s4")
        A(f"v_mov_b32 v11, 128\nv_cndmask_b32 v3, v3, v11, vcc")
        A(f"v_add3_u32 v{vFo}, v2, v3, s3")
        A("s_mov_b64 exec, 0xffff")
        A.vmem(f"buffer_load_dword v{vBase}, v{vFo}, s[64:67], 0 offen sc1", "base")
        A("s_mov_b64 exec, -1")
        srd(A, 40, 46, 0x800000)
    def extras(A, j):
        if j == T1: A.vmem(f"buffer_load_dword v13, v{vT}, s[12:15], s7 offen", "touch")
        if j == T2: A.vmem(f"buffer_load_dword v13, v{vT}, s[16:19], s7 offen", "touch")
    if T1 == 0 or T2 == 0: setup_touch(A)
    for j in range(LOOK0):
        extras(A, j); seg(A, j)
        if j == 0 and not (T1 == 0 or T2 == 0): setup_touch(A)
        if j == 1: setup_flags(A)
    extras(A, LOOK0)
    stamp(A, "iss0")
    nxt = LOOK0
    j = 0
    while nxt < 16:
        A.wait(vm=("s", j)); bar(A, f"B{j}")
        if j + LOOK >= nxt:
            seg(A, nxt); nxt += 1; extras(A, nxt)
        j += 1
    jsplit = j
    A(f"s_cmp_ge_u32 s{sW}, 6")
    A("s_cbranch_scc1 Lwload")
    split = (list(A.vm), list(A.stamps), list(A.names), list(A.bars))
    A(f"s_getreg_b32 s{sXcc}, hwreg(HW_REG_XCC_ID)")
    A(f"s_lshl_b32 s{sStep}, s{sR}, 20")
    A(f"s_and_b32 s{sXcc}, s{sXcc}, 15")
    A(f"v_add_u32 v{vD}, 64, v{vBase}\nv_and_b32 v{vD}, 0xffffffc0, v{vD}\nv_or_b32 v{vD}, s{sXcc}, v{vD}")
    A(f"s_mov_b32 s{sSlow}, 0")
    for j in range(jsplit, 16):
        A.wait(vm=("s", j)); bar(A, f"B{j}")
    A("s_mov_b64 exec, 0x3330")
    A(f"s_mov_b32 s{sCnt}, 0")
    bar(A, "Bh")
    def poll(A): A.vmem(f"buffer_load_dword v{vNew}, v{vFo}, s[64:67], 0 offen sc1", "poll")
    def check(A, bit, lanes):
        A(f"v_cmp_ne_u32 vcc, v{vNew}, v{vBase}")
        A(f"v_and_b32 v21, {15 + bit}, v{vNew}")
        A(f"s_or_b32 s3, s{sXcc}, {bit}")
        A(f"v_cmp_eq_u32 s[44:45], s3, v21")
        A("s_and_b32 s44, s44, vcc_lo")
        A(f"s_cmp_eq_u32 s44, {lanes:#x}")
    def dflag(A, add):
        if add: A(f"v_add_u32 v{vD}, {add}, v{vD}")
        A("s_mov_b64 exec, 4")
        A.vmem(f"buffer_store_dword v{vD}, v{vFo}, s[64:67], 0 offen", "flag")
        if add:
            lab = f"Lnb{add}"
            A(f"s_cmp_eq_u32 s{sSlow}, 0")
            A(f"s_cbranch_scc1 {lab}")
            A("s_mov_b64 exec, 8")
            A(f"buffer_store_dword v{vD}, v{vFo}, s[64:67], 0 offen sc1")
            A("s_waitcnt vmcnt(0)")
            A(f"{lab}:")
        A("s_mov_b64 exec, -1")
    A("Lsp:")
    poll(A)
    A(f"s_add_u32 s{sCnt}, s{sCnt}, 1")
    A(f"s_cmp_gt_u32 s{sCnt}, {0 if FORCESLOW else 12}")
    A("s_cbranch_scc1 Lretry0")
    A.wait(vm="all")
    check(A, 0, 0x3330)
    A("s_cbranch_scc0 Lsp")
    A("Lgot0:")
    A("s_mov_b64 exec, -1")
    stamp(A, "got0")
    def gate(A, n, bit, lanes):
        A.wait(vm="poll")
        A(f"s_mov_b64 exec, {lanes:#x}")
        check(A, bit, lanes)
        A(f"s_branch Lretry{n}" if FORCESLOW else f"s_cbranch_scc0 Lretry{n}")
        A(f"Lgot{n}:")
        A("s_mov_b64 exec, -1")
        stamp(A, f"got{n}")
    def xpoll(A, lanes):
        A(f"s_mov_b64 exec, {lanes:#x}"); poll(A); A("s_mov_b64 exec, -1")
    nxt = 20
    for _ in range(P0): seg(A, nxt, 8192); nxt += 1
    for j in range(20, 32):
        A.wait(vm=("s", j))
        if j == 25: dflag(A, 64 + 16)
        if j == 31: gate(A, 2, 16, 0x4440)
        bar(A, f"B{j}")
        if j == 20: dflag(A, 0)
        if j == PJ: xpoll(A, 0x3330)
        if j == PJ + 1:
            while nxt < 26: seg(A, nxt, 8192); nxt += 1
            gate(A, 1, 16, 0x3330)
        n = 0
        while nxt < (26 if j <= PJ else 32) and nxt - NS <= j - 2 and n < (1 if j <= PJ else 2):
            seg(A, nxt, 8192); nxt += 1; n += 1
        if j == E0J:
            xpoll(A, 0x4440)
            A.wait(vm=("s", 31)); dflag(A, 64 + 32)
    assert nxt == 32
    A("s_mov_b64 exec, 0x4440")
    A(f"s_mov_b32 s{sCnt}, 0")
    A("Lsz:")
    poll(A)
    A(f"s_add_u32 s{sCnt}, s{sCnt}, 1")
    A(f"s_cmp_gt_u32 s{sCnt}, {0 if FORCESLOW else 12}")
    A("s_cbranch_scc1 Lretry3")
    A.wait(vm="all")
    check(A, 32, 0x4440)
    A("s_cbranch_scc0 Lsz")
    A("Lgot3:")
    A("s_mov_b64 exec, -1")
    bar(A, "Bz")
    barsP = list(A.bars)
    dump(A)
    A("s_endpgm")
    cold0 = len(A.L)
    for n in range(4):
        A(f"Lretry{n}:")
        A(f"s_mov_b32 s{sWhich}, {n}")
        if n < 3: A("s_branch Lretry")
    A("Lretry:")
    A(f"s_mov_b32 s{sCnt}, 0")
    A("Lr_loop:")
    A("s_mov_b64 exec, 0xffff")
    A(f"buffer_load_dword v{vNew}, v{vFo}, s[64:67], 0 offen sc1")
    A(f"s_add_u32 s{sCnt}, s{sCnt}, 1")
    A("s_waitcnt vmcnt(0)")
    A(f"v_cmp_ne_u32 s[56:57], v{vNew}, v{vBase}")
    A(f"v_and_b32 v21, 15, v{vNew}")
    A(f"v_cmp_eq_u32 s[58:59], s{sXcc}, v21")
    A(f"v_and_b32 v21, 16, v{vNew}")
    A(f"v_cmp_ne_u32 s[60:61], 0, v21")
    A(f"v_and_b32 v21, 32, v{vNew}")
    A(f"v_cmp_ne_u32 s[62:63], 0, v21")
    if FORCESLOW: A("s_mov_b32 s58, 0")
    A("s_or_b32 s44, s58, 0x8888\ns_and_b32 s44, s44, s56")
    A(f"s_cmp_ge_u32 s{sWhich}, 2")
    A("s_cbranch_scc1 Lr_e")
    A(f"s_cmp_eq_u32 s{sWhich}, 0\ns_cselect_b32 s45, 0xffff, s60")
    A("s_and_b32 s45, s45, s44\ns_lshr_b32 s3, s45, 1\ns_and_b32 s45, s45, s3")
    A("s_branch Lr_db")
    A("Lr_e:")
    A(f"s_cmp_eq_u32 s{sWhich}, 2\ns_cselect_b32 s45, s60, s62\ns_and_b32 s44, s44, s45\ns_mov_b32 s45, 0")
    A("Lr_db:")
    A("s_lshr_b32 s3, s44, 2\ns_or_b32 s45, s45, s3")
    A("s_lshr_b32 s3, s44, 3\ns_or_b32 s45, s45, s3\ns_and_b32 s45, s45, 0x1110")
    A("s_andn2_b32 s3, s56, s58\ns_and_b32 s3, s3, 0x7770\ns_and_b32 s4, s56, 0x8880\ns_or_b32 s3, s3, s4")
    A(f"s_lshr_b32 s4, s{sCnt}, 4\ns_or_b32 s3, s3, s4")
    A("s_cbranch_scc0 Lr_chk")
    A(f"s_cmp_lg_u32 s{sSlow}, 0")
    A("s_cbranch_scc1 Lr_chk")
    A("s_and_b32 s3, s56, s60\ns_and_b32 s3, s3, 3\ns_cmp_lg_u32 s3, 3")
    A("s_cbranch_scc1 Lr_again")
    A(f"s_mov_b32 s{sSlow}, 1")
    A("buffer_wbl2 sc1")
    A("s_waitcnt vmcnt(0)")
    A("s_mov_b64 exec, 8")
    A(f"buffer_store_dword v{vD}, v{vFo}, s[64:67], 0 offen sc1")
    A("Lr_chk:")
    A("s_cmp_eq_u32 s45, 0x1110")
    A("s_cbranch_scc1 Lr_done")
    A("Lr_again:")
    A(f"s_cmp_lt_u32 s{sCnt}, 0x100000")
    A("s_cbranch_scc1 Lr_loop")
    A("Lr_done:")
    A(f"s_cmp_eq_u32 s{sSlow}, 0")
    A("s_cbranch_scc1 Lr_out")
    A("buffer_inv sc1")
    A("s_mov_b64 exec, 8")
    A(f"v_add_u32 v{vD}, 64, v{vD}")
    A(f"buffer_store_dword v{vD}, v{vFo}, s[64:67], 0 offen sc1")
    A("s_waitcnt vmcnt(0)")
    A("Lr_out:")
    for n in range(3):
        A(f"s_cmp_eq_u32 s{sWhich}, {n}")
        A(f"s_cbranch_scc1 Lgot{n}")
    A("s_branch Lgot3")
    coldtext = A.L[cold0:]; del A.L[cold0:]
    A("Lwload:")
    A.vm, A.stamps, A.names, A.bars = [list(x) for x in split]; A.lg = []
    A(f"s_lshl_b32 s{sStep}, s{sR}, 17")
    A(f"v_lshlrev_b32 v11, 6, v{vT}\nv_lshrrev_b32 v14, 5, v{vL}\nv_lshl_add_u32 v12, v14, 19, v11")
    A(f"s_lshl_b32 s6, s{sR}, 20\ns_add_u32 s6, s6, s{sTile}\ns_lshl_b32 s3, s{sH}, 7\ns_add_u32 s6, s6, s3")
    def te(A):
        A.vmem(f"buffer_load_dword v13, v12, s[40:43], s6 offen", "te")
        if TE > 2:
            A(f"s_add_u32 s6, s6, {32*8192}")
            A.vmem(f"buffer_load_dword v13, v{12 if TE == 4 else 11}, s[40:43], s6 offen", "te")
    nxt = 16
    if TE and WPRE == 0: te(A)
    for j in range(jsplit, 16):
        A.wait(vm=("s", j)); bar(A, f"B{j}")
        n = 0
        while nxt < 16 + (WPRE if TE else 4) and n < 2:
            seg(A, nxt); nxt += 1; n += 1
            if nxt == 16 + WPRE and TE: te(A)
    if TE: A.wait(vm="te"); stamp(A, "te")
    while nxt <= WMAX: seg(A, nxt); nxt += 1
    A.wait(vm=("s", 19)); bar(A, "Bh")
    for j in range(20, 32):
        A.wait(vm=("s", j)); bar(A, f"B{j}")
        if nxt < 32: seg(A, nxt); nxt += 1
    if STAMP: bar(A, "Bz")
    else: A.bars.append("Bz")
    barsW = list(A.bars)
    dump(A)
    A("s_endpgm")
    A.raw(".p2align 6")
    A("Lcons:")
    A.vm = []; A.lg = []; A.stamps = A.stamps[:1]; A.names = A.names[:1]; A.bars = []
    acc1, acc2, bias, tmp = 24, 88, 152, 184
    vA = [2, 3]; vX = [4, 5]
    vH, vHw, vKey, vSt, vLin, vBr, vEmb, vNoise, vOo, vBw, vEx, vFl = 6, 7, 8, 9, 10, 11, 12, 13, 14, 15, 22, 23
    t0 = 16
    sWi, sWj, sPr, sWr, sOut = 32, 33, 34, 35, 59
    sK1, sK, sSkip, sSig = 52, 54, 56, 58
    if PRIO: A(f"s_setprio {PRIO}")
    A(f"s_and_b32 s{sWi}, s{sW}, 1\ns_lshr_b32 s{sWj}, s{sW}, 1")
    A(f"s_mul_i32 s{sPr}, s{sWj}, {RING}\ns_mul_i32 s{sWr}, s{sWi}, {RING}\ns_add_u32 s{sWr}, s{sWr}, {2*RING}")
    A(f"s_lshl_b32 s6, s{sR}, 8\ns_lshl_b32 s3, s{sWi}, 7\ns_add_u32 s6, s6, s3")
    A(f"v_and_b32 v{vEmb}, 31, v{vL}\nv_lshl_add_u32 v{vEmb}, v{vEmb}, 2, s6")
    A(f"s_lshl_b32 s6, s6, 12\ns_lshl_b32 s3, s{sWj}, 7\ns_add_u32 s6, s6, s3\ns_add_u32 s{sOut}, s6, s{sTile}")
    A(f"s_lshl_b32 s65, s2, 8\ns_lshl_b32 s3, s{sWj}, 4\ns_add_u32 s65, s65, s3\ns_lshl_b32 s3, s{sWi}, 2\ns_add_u32 s65, s65, s3")
    A("s_waitcnt lgkmcnt(0)")
    A(f"s_load_dword s{sSig}, s[38:39], 0")
    A(f"s_load_dword s66, s[50:51], s65")
    srd(A, 24, 42, 1024)
    A.vmem(f"buffer_load_dword v{vEmb}, v{vEmb}, s[24:27], 0 offen", "emb")
    if TC:
        A("s_getpc_b64 s[74:75]")
        A("Lpc:")
        A(f"s_sub_u32 s74, s74, Lpc-{KNAME}\ns_subb_u32 s75, s75, 0")
        A(f"s_lshr_b32 s3, s2, 3\ns_lshl_b32 s3, s3, 2\ns_add_u32 s3, s3, s{sW}\ns_lshl_b32 s3, s3, 7")
        A(f"s_load_dword s73, s[74:75], s3")
        A(f"s_add_u32 s3, s3, 64")
        A(f"s_load_dword s73, s[74:75], s3")
    srd(A, 68, 50, 0x10000)
    srd(A, 20, 46, 0x800000)
    if TPO:
        A(f"v_lshlrev_b32 v{t0}, {19 - (TPO.bit_length() - 1)}, v{vL}")
        A(f"s_mov_b64 exec, {(1 << TPO) - 1 if TPO < 64 else -1}")
        A.vmem(f"buffer_load_dword v{tmp+20}, v{t0}, s[20:23], s{sOut} offen", "tp")
        A("s_mov_b64 exec, -1")
    r_, cc, gam, hi, c2, u = t0, t0+1, t0+2, t0+3, t0+4, t0+5
    A(f"v_lshrrev_b32 v{r_}, 2, v{vL}\nv_and_b32 v{r_}, 3, v{r_}")
    A(f"v_and_b32 v{cc}, 3, v{vL}")
    A(f"v_lshrrev_b32 v{gam}, 4, v{vL}\nv_and_b32 v{gam}, 1, v{gam}")
    A(f"v_lshrrev_b32 v{hi}, 5, v{vL}")
    A(f"v_lshrrev_b32 v{c2}, 1, v{cc}")
    A(f"v_lshl_add_u32 v{c2}, v{gam}, 1, v{c2}")
    A(f"v_and_b32 v{u}, 2, v{r_}\nv_lshlrev_b32 v{u}, 1, v{u}")
    A(f"v_lshl_add_u32 v{u}, v{hi}, 1, v{u}")
    A(f"v_xor_b32 v{c2}, v{c2}, v{u}")
    A(f"v_and_b32 v{cc}, 1, v{cc}\nv_lshlrev_b32 v{cc}, 3, v{cc}")
    A(f"v_lshl_add_u32 v{cc}, v{c2}, 4, v{cc}")
    A(f"v_lshl_add_u32 v{gam}, v{hi}, 2, v{r_}")
    A(f"v_lshl_add_u32 v{cc}, v{gam}, 7, v{cc}")
    A(f"v_xor_b32 v{c2}, 64, v{cc}")
    A(f"v_add_u32 v{vX[0]}, s{sPr}, v{cc}\nv_add_u32 v{vX[1]}, s{sPr}, v{c2}")
    A(f"v_add_u32 v{vA[0]}, s{sWr}, v{cc}\nv_add_u32 v{vA[1]}, s{sWr}, v{c2}")
    A(f"v_lshlrev_b32 v{vEx}, 4, v{vL}")
    A(f"v_add_u32 v{vH}, s{sPr}, v{vEx}")
    A(f"s_lshl_b32 s3, s{sWi}, 13")
    A(f"v_add_u32 v{vHw}, s3, v{vH}")
    A(f"s_mul_i32 s4, s{sW}, {RING}\ns_add_u32 s4, s4, 8192")
    A(f"v_add_u32 v{vLin}, s4, v{vEx}")
    A(f"v_and_b32 v{r_}, 31, v{vL}")
    A(f"v_lshrrev_b32 v{cc}, 3, v{r_}\nv_bfe_u32 v{c2}, v{r_}, 1, 1\nv_lshl_add_u32 v{cc}, v{cc}, 1, v{c2}")
    A(f"v_bfe_u32 v{c2}, v{r_}, 2, 1")
    A(f"v_cmp_eq_u32 vcc, v{c2}, v{hi}")
    A(f"v_and_b32 v{c2}, 1, v{r_}\nv_lshlrev_b32 v{tmp+7}, 4, v{c2}")
    A(f"v_cndmask_b32 v{vKey}, 63, v{cc}, vcc")
    A(f"v_and_b32 v{cc}, 7, v{r_}\nv_lshlrev_b32 v{cc}, 4, v{cc}")
    A(f"v_lshl_add_u32 v{cc}, v{hi}, 3, v{cc}")
    A(f"v_lshl_add_u32 v{cc}, v{r_}, 7, v{cc}")
    A(f"v_add_u32 v{vSt}, s4, v{cc}")
    A(f"v_lshrrev_b32 v{cc}, 3, v{vL}\nv_and_b32 v{c2}, 7, v{vL}\nv_xor_b32 v{c2}, v{c2}, v{cc}\nv_lshlrev_b32 v{c2}, 4, v{c2}")
    A(f"v_lshl_add_u32 v{vOo}, v{cc}, 13, v{c2}")
    A(f"v_lshl_add_u32 v{vBr}, v{hi}, 4, s4")
    A(f"v_lshl_add_u32 v{vBw}, v{vL}, 3, s4")
    A(f"v_and_b32 v{c2}, 2, v{cc}\nv_lshlrev_b32 v{c2}, 1, v{c2}\nv_and_b32 v{u}, 4, v{cc}\nv_lshrrev_b32 v{u}, 1, v{u}")
    A(f"v_xor_b32 v{c2}, v{c2}, v{u}\nv_and_b32 v{u}, 7, v{vL}\nv_xor_b32 v{c2}, v{c2}, v{u}\nv_lshlrev_b32 v{c2}, 4, v{c2}")
    A(f"v_lshl_add_u32 v{vEx}, v{cc}, 13, v{c2}")
    A(f"s_mov_b32 s64, s{sOut}")
    A("s_waitcnt lgkmcnt(0)")
    consts(A, sSig, sB, tmp, sK1, sK, sSkip, vNoise)
    A(f"s_getreg_b32 s3, hwreg(HW_REG_XCC_ID)\ns_and_b32 s3, s3, 15")
    A(f"s_add_u32 s66, s66, 64\ns_and_b32 s66, s66, 0xffffffc0\ns_or_b32 s66, s66, s3\nv_mov_b32 v{vFl}, s66")
    def cflag(b):
        A.wait(vm=("hst", b))
        A("s_mov_b64 exec, 1")
        A.vmem(f"buffer_store_dword v{vFl}, off, s[68:71], s65", "flag")
        A("s_mov_b64 exec, -1")
        stamp(A, f"flag{b}")
    hp = tmp
    A(f"s_lshr_b32 s3, s{sSkip}, 16")
    A(f"v_lshlrev_b32 v{tmp+7}, v{tmp+7}, s3")
    for j in range(8):
        A(f"v_cmp_eq_u32 vcc, {j}, v{vKey}\ns_nop 1\nv_cndmask_b32 v{tmp+8+j}, 0, v{tmp+7}, vcc")
    A.wait(vm="emb")
    for x in [f"v_lshlrev_b32 v{hp}, 16, v{vEmb}", f"v_and_b32 v{hp+1}, 0xffff0000, v{vEmb}",
        f"v_mul_f32 v{hp}, v{hp}, v{vNoise}", f"v_mul_f32 v{hp+1}, v{hp+1}, v{vNoise}",
        f"v_cvt_pk_bf16_f32 v{hp+2}, v{hp}, v{hp+1}", f"v_lshlrev_b32 v{hp}, 16, v{hp+2}",
        f"v_and_b32 v{hp+1}, 0xffff0000, v{hp+2}", f"v_mul_f32 v{hp}, 0xbfb8aa3b, v{hp}", f"v_mul_f32 v{hp+1}, 0xbfb8aa3b, v{hp+1}"]: A(x)
    A.lds(f"ds_write_b64 v{vBw}, v[{hp}:{hp+1}] offset:{7*4096}", "bw")
    for tau in range(2):
        for q in range(4):
            b = bias + tau*16 + q*4
            A.lds(f"ds_read_b128 v[{b}:{b+3}], v{vBr} offset:{7*4096 + (32*tau + 8*q) * 4}", "br")

    ms = [(s, (0, 1)) for s in range(64 - 2*EPI)] + [(s, (0,)) for s in range(64 - 2*EPI, 64)] + [(s, (1,)) for s in range(64 - 2*EPI, 64)]
    def reads(i):
        s, taus = ms[i]
        fb = (i % 3) * 16; o = ((s // 2) % NS) * 4096 + (s & 1) * 2048
        w = [f"ds_read_b64_tr_b16 a[{fb+4*tau+2*rho}:{fb+4*tau+2*rho+1}], v{vA[tau]} offset:{o + rho*1024}" for tau in taus for rho in range(2)]
        if s < 32:
            p = [f"ds_read_b64_tr_b16 a[{fb+8+4*t+2*rho}:{fb+8+4*t+2*rho+1}], v{vX[t]} offset:{o + rho*1024}" for t in range(2) for rho in range(2)]
        else:
            p = [f"ds_read_b128 a[{fb+8+4*t}:{fb+8+4*t+3}], v{vH} offset:{o + t*1024}" for t in range(2)]
        h = len(p) // 2
        return p[:h] + w[:2] + p[h:] + w[2:]
    def mfmas(i):
        s, taus = ms[i]
        fb = (i % 3) * 16
        out = []
        for tau in taus:
            for t in range(2):
                w = f"a[{fb+4*tau}:{fb+4*tau+3}]"; p = f"a[{fb+8+4*t}:{fb+8+4*t+3}]"
                if s < 32:
                    d = acc1 + 16*(2*tau+t)
                    c = "0" if s == 0 else f"v[{d}:{d+15}]"
                    out.append(f"v_mfma_f32_32x32x16_bf16 v[{d}:{d+15}], {w}, {p}, {c}")
                else:
                    d = acc2 + 16*(2*tau+t)
                    out.append(f"v_mfma_f32_32x32x16_bf16 v[{d}:{d+15}], {p}, {w}, v[{d}:{d+15}]")
        return out
    of = {0: "", 1: " nt", 2: " sc1", 3: " sc0 sc1", 4: " sc1 nt"}[ONT]
    def epi_ops(tau):
        ops = []
        for t in range(2):
            for q in range(4):
                b = bias + ((tau*2+t)*4+q)*2
                d = acc2 + 16*(2*tau+t) + 4*q
                ops.append(lambda b=b, d=d: A(f"v_cvt_pk_bf16_f32 v{b}, v{d}, v{d+1}"))
                ops.append(lambda b=b, d=d: A(f"v_cvt_pk_bf16_f32 v{b+1}, v{d+2}, v{d+3}"))
                ops.append(lambda b=b, t=t, q=q: A.lds(f"ds_write_b64 v{tmp+4*t+q}, v[{b}:{b+1}] offset:{tau*4096}", "ow"))
        for i in range(4*tau, 4*tau+4):
            ops.append(lambda i=i: A.lds(f"ds_read_b128 v[{acc1+4*i}:{acc1+4*i+3}], v{vLin} offset:{i*1024}", ("o", i)))
        def st(i):
            A.wait(lg=[("o", i)])
            A.vmem(f"buffer_store_dwordx4 v[{acc1+4*i}:{acc1+4*i+3}], v{vOo}, s[20:23], s{sOut} offen{of}", "st")
            if i < 7: A(f"s_add_u32 s{sOut}, s{sOut}, {8*8192}")
        for i in range(4*tau, 4*tau+4):
            ops.append(lambda i=i: st(i))
        return ops
    seen = set()
    def step(i, extra=()):
        s, taus = ms[i]
        A.wait(lg=[("f", i)])
        m = mfmas(i)
        A(m[0])
        rd = []
        if i < 8:
            fb = (i % 3) * 16; tau = (i >> 1) & 1; f = i & 1
            A(f"s_cmp_lg_u32 s{sWi}, {i >> 2}")
            A(f"s_cbranch_scc1 Lres{i}")
            for t in range(2):
                d = acc2 + 16*(2*tau+t)
                c = "0" if f == 0 else f"v[{d}:{d+15}]"
                A(f"v_mfma_f32_32x32x16_bf16 v[{d}:{d+15}], a[{fb+8+4*t}:{fb+8+4*t+3}], v[{tmp+8+4*f}:{tmp+11+4*f}], {c}")
            A(f"Lres{i}:")
        if i + 2 < len(ms) and (ms[i+2][0] < 32) == (s < 32):
            sg = ms[i+2][0] // 2
            if sg not in seen and not 16 <= sg < 20:
                bar(A, f"B{sg}")
            seen.add(sg)
            rd = reads(i + 2)
        fill = []
        if i == 40:
            fill = [lambda t=t, q=q: A(f"v_xor_b32 v{tmp+4*t+q}, {(4*t+q) << 4}, v{vSt}") for t in range(2) for q in range(4)]
        if i == F0: fill.append(lambda: cflag(0))
        if i == F1:
            fill.append(lambda: A(f"v_add_u32 v{vFl}, 0x50, v{vFl}")); fill.append(lambda: cflag(1))
        if i in (WBS, WBS2) and i:
            def wb():
                A(f"s_lshr_b32 s3, s2, 3\ns_or_b32 s3, s3, s{sW}")
                A(f"s_cbranch_scc1 Lnowb{i}")
                A("buffer_wbl2 sc1")
                A(f"Lnowb{i}:")
            fill.append(wb)
        fill += list(extra)
        n = len(m)
        for g in range(n):
            for x in rd[(len(rd)*g)//n:(len(rd)*(g+1))//n]: A.lds(x, ("f", i + 2))
            for f in fill[(len(fill)*g)//n:(len(fill)*(g+1))//n]: f()
            if g < n - 1: A(m[g+1])
    assert F0 <= 8 or 32 <= F0 < F1 <= 37
    F0s, F0 = F0, (F0 if F0 >= 32 else -1)
    bar(A, "B0"); seen.add(0)
    for i in (0, 1):
        for x in reads(i): A.lds(x, ("f", i))
    for i in range(32): step(i)
    stamp(A, "g1")
    A.wait(vm="tp")
    A("s_nop 9")
    n = 0
    for tau in range(2):
        for half in range(2):
            for t in range(2):
                a0 = acc1 + (2*tau+t)*16 + half*8; b0 = bias + tau*16 + half*8; e0 = tmp + (n & 1) * 8; h = tmp + 16 + (n & 1) * 4
                A.raw(".p2align 3")
                for p in range(4):
                    A(f"v_pk_fma_f32 v[{a0+2*p}:{a0+2*p+1}], v[{a0+2*p}:{a0+2*p+1}], s[{sK1}:{sK1+1}], v[{b0+2*p}:{b0+2*p+1}]")
                for p in range(8):
                    A(f"v_exp_f32 v{e0+p}, v{a0+p}")
                if n == F0s: cflag(0); A.raw(".p2align 3")
                for p in range(4):
                    A(f"v_pk_fma_f32 v[{e0+2*p}:{e0+2*p+1}], v[{e0+2*p}:{e0+2*p+1}], s[{sK}:{sK+1}], s[{sK}:{sK+1}]")
                for p in range(8):
                    A(f"v_rcp_f32 v{e0+p}, v{e0+p}")
                for p in range(4):
                    A(f"v_pk_mul_f32 v[{a0+2*p}:{a0+2*p+1}], v[{a0+2*p}:{a0+2*p+1}], v[{e0+2*p}:{e0+2*p+1}]")
                for p in range(4):
                    A(f"v_cvt_pk_bf16_f32 v{h+p}, v{a0+2*p}, v{a0+2*p+1}")
                A.vmem(f"buffer_store_dwordx4 v[{h}:{h+3}], v{vEx}, s[20:23], s64 offen", ("hst", n // 4))
                A.lds(f"ds_write_b128 v{vHw}, v[{h}:{h+3}] offset:{6*4096 + n*1024}", "hw")
                if n < 7: A(f"s_add_u32 s64, s64, {8*8192}")
                n += 1
    if F0s == 8: cflag(0)
    A.wait(lg="all")
    bar(A, "Bh")
    for i in (32, 33):
        for x in reads(i): A.lds(x, ("f", i))
    nb = len(ms) - 2*EPI
    ops0 = epi_ops(0) if EPI else []
    for i in range(32, len(ms)):
        extra = []
        if EPI and i > nb:
            k = i - nb - 1; m_ = 2*EPI - 1
            extra = ops0[(len(ops0)*k)//m_:(len(ops0)*(k+1))//m_]
        if i == nb: stamp(A, "g2a")
        step(i, extra)
    stamp(A, "g2")
    A("s_nop 9")
    for tau in ((1,) if EPI else (0, 1)):
        ops = epi_ops(tau)
        for f in ops[:28]: f()
        if tau == 1: stamp(A, "e1"); bar(A, "Bz")
        for f in ops[28:]: f()
    stamp(A, "e3")
    barsC = list(A.bars)
    assert barsC == barsP == barsW, (barsC, barsP, barsW)
    dump(A)
    A("Lend:")
    A("s_endpgm")
    A.L += coldtext
    A.raw(".fill 2048, 4, 0xbf800000")
    return wrap(A.text(), 256, 512, 163840, 256, 208)

if __name__ == "__main__":
    kw = dict(a.split("=") for a in sys.argv[2:])
    kw = {k: int(v) for k, v in kw.items()}
    open(sys.argv[1], "w").write(gen(**kw))
```
